```python
import torch

def _softmax(x, axis=-1):
    return torch.softmax(x, dim=axis)
def _gelu(x):
    return torch.nn.functional.gelu(x, approximate="tanh")
def _silu(x):
    return torch.nn.functional.silu(x)
def _sigmoid(x):
    return torch.sigmoid(x)
def _layernorm(x, axis=-1, eps=1e-5):
    m = x.mean(dim=axis, keepdim=True)
    v = x.var(dim=axis, keepdim=True, unbiased=False)
    return (x - m) / torch.sqrt(v + eps)
def _scatter_add(tgt, idx, src, axis=0):
    return tgt.clone().index_add_(axis, idx, src)
def _segment_sum(src, seg, n):
    out = torch.zeros((n,) + src.shape[1:], dtype=src.dtype)
    return out.index_add_(0, seg, src)
def _pad(x, pw):
    flat = tuple(v for pair in reversed(pw) for v in pair)
    return torch.nn.functional.pad(x, flat)

kernel_name = 'recurrent_scan__spectral_fnet__glu_gated_bilinear__prompt'

def setup_inputs():

    _w = (lambda a: (lambda t: t.to(torch.bfloat16) if t.is_floating_point() else t)(torch.as_tensor(a)))
    def _A_setup():
        B, S, D = 1, 2048, 512
        ns = torch.arange(S)[:, None] * torch.arange(S)[None, :]
        nd = torch.arange(D)[:, None] * torch.arange(D)[None, :]
        Ws_re = torch.cos(-2.0 * torch.pi * ns / S).to(float)
        Ws_im = torch.sin(-2.0 * torch.pi * ns / S).to(float)
        Wd_re = torch.cos(-2.0 * torch.pi * nd / D).to(float)
        Wd_im = torch.sin(-2.0 * torch.pi * nd / D).to(float)
        return {
            "x": _w((lambda *s: torch.randn(*s, dtype=torch.bfloat16) * 0.05)(B, S, D)),
            "dft_seq_re": _w(Ws_re),
            "dft_seq_im": _w(Ws_im),
            "dft_hid_re": _w(Wd_re),
            "dft_hid_im": _w(Wd_im),
        }
    _A_in = _A_setup()

    def _B_setup():
        B, S, D, F = 1, 2048, 512, 1376
        return {
            "x": _w((lambda *s: torch.randn(*s, dtype=torch.bfloat16) * 0.05)(B, S, D)),
            "w_gate": _w((lambda *s: torch.randn(*s, dtype=torch.bfloat16) * 0.05)(D, F) * (D ** -0.5)),
            "w_up": _w((lambda *s: torch.randn(*s, dtype=torch.bfloat16) * 0.05)(D, F) * (D ** -0.5)),
            "w_down": _w((lambda *s: torch.randn(*s, dtype=torch.bfloat16) * 0.05)(F, D) * (F ** -0.5)),
        }
    _B_in = _B_setup()

    return {
        "A_x": _A_in["x"],
        "A_dft_seq_re": _A_in["dft_seq_re"],
        "A_dft_seq_im": _A_in["dft_seq_im"],
        "A_dft_hid_re": _A_in["dft_hid_re"],
        "A_dft_hid_im": _A_in["dft_hid_im"],
        "B_x": _B_in["x"],
        "B_w_gate": _B_in["w_gate"],
        "B_w_up": _B_in["w_up"],
        "B_w_down": _B_in["w_down"],
    }

def reference(A_x, A_dft_seq_re, A_dft_seq_im, A_dft_hid_re, A_dft_hid_im, B_x, B_w_gate, B_w_up, B_w_down):
    def _A_ref(x, dft_seq_re, dft_seq_im, dft_hid_re, dft_hid_im):
        a = torch.einsum("bsd,ed->bse", x, dft_hid_re)
        b = torch.einsum("bsd,ed->bse", x, dft_hid_im)
        y = torch.einsum("ts,bse->bte", dft_seq_re, a) - torch.einsum("ts,bse->bte", dft_seq_im, b)
        return y

    def _B_ref(x, w_gate, w_up, w_down):
        g = torch.einsum("bsd,df->bsf", x, w_gate)
        u = torch.einsum("bsd,df->bsf", x, w_up)
        h = g * u
        return torch.einsum("bsf,fd->bsd", h, w_down)

    x = A_x
    xn = _layernorm(x, axis=-1)
    s = _A_ref(xn, A_dft_seq_re, A_dft_seq_im, A_dft_hid_re, A_dft_hid_im)
    g = _silu(_B_ref(xn, B_w_gate, B_w_up, B_w_down))
    return x + s * g
```

```python
import re

TRANS = ("v_exp_f32", "v_log_f32", "v_rcp_f32", "v_rsq_f32", "v_sqrt_f32", "v_sin_f32", "v_cos_f32")

def regs_of(tok):
    tok = tok.strip().lstrip("-")
    if tok.startswith("abs(") or tok.startswith("|"):
        tok = tok.replace("abs(", "").replace(")", "").replace("|", "")
    m = re.fullmatch(r"([vsa])\[(\d+):(\d+)\]", tok)
    if m: return {(m.group(1), i) for i in range(int(m.group(2)), int(m.group(3)) + 1)}
    m = re.fullmatch(r"([vsa])(\d+)", tok)
    if m: return {(m.group(1), int(m.group(2)))}
    if tok == "vcc": return {("s", "vcc")}
    if tok == "m0": return {("s", "m0")}
    if tok == "exec": return {("s", "exec")}
    return set()

class Ins:
    def __init__(self, text):
        self.text = text
        t = text.split(";")[0].strip()
        self.label = t.endswith(":") or t.startswith(".") or not t
        self.op = "" if self.label else t.split()[0]
        rest = t[len(self.op):] if not self.label else ""
        toks = [x.strip() for x in rest.split(",")] if rest.strip() else []
        if toks:
            last = toks[-1].split()
            self.mods = last[1:]; toks[-1] = last[0] if last else ""
        else:
            self.mods = []
        self.toks = toks
        op = self.op
        self.mfma = op.startswith("v_mfma")
        self.valu = op.startswith("v_") and not self.mfma
        self.salu = op.startswith("s_")
        self.ds = op.startswith("ds_")
        self.vmem = op.startswith("buffer_") or op.startswith("global_")
        self.lds_dma = self.vmem and ("lds" in self.mods or "_lds_" in op)
        self.w = set(); self.r = set(); self.srcC = set(); self.ab = set(); self.store_data = set()
        R = [regs_of(x) for x in toks]
        if self.mfma:
            self.w = R[0]; self.ab = R[1] | R[2]; self.srcC = R[3]; self.r = self.ab | self.srcC
            self.passes = 8 if "32x32" in op else 4
        elif self.valu:
            if op.startswith("v_cmp"):
                self.w = R[0]; self.r = set().union(*R[1:])
            elif op.startswith("v_permlane") and "swap" in op:
                self.w = R[0] | R[1]; self.r = R[0] | R[1]
            elif op.startswith(("v_add_co", "v_addc_co", "v_sub_co")):
                self.w = R[0] | R[1]; self.r = set().union(*R[2:])
            else:
                self.w = R[0]; self.r = set().union(*R[1:]) if len(R) > 1 else set()
                if op.startswith(("v_fmac", "v_dot2c", "v_writelane")): self.r |= R[0]
        elif self.ds:
            if op.startswith(("ds_read", "ds_bpermute", "ds_swizzle")):
                self.w = R[0]; self.r = set().union(*R[1:])
            else:
                self.r = set().union(*R)
        elif self.vmem:
            if "load" in op and not self.lds_dma:
                self.w = R[0]; self.r = set().union(*R[1:])
            else:
                self.r = set().union(*R) if R else set()
                if "store" in op and ("x4" in op or "x3" in op): self.store_data = R[0] if op.startswith("buffer") else R[1]
            if self.lds_dma: self.r |= {("s", "m0")}
        elif self.salu:
            if op.startswith(("s_cmp", "s_cbranch", "s_branch", "s_waitcnt", "s_barrier", "s_nop", "s_endpgm", "s_setprio", "s_sleep")):
                self.r = set().union(*R) if R else set()
            elif R:
                self.w = R[0]; self.r = set().union(*R[1:]) if len(R) > 1 else set()
        self.states = int(toks[0], 0) + 1 if op == "s_nop" else 1

def need(p, c):
    n = 0
    vw = {x for x in p.w if x[0] in "va"}; sw = {x for x in p.w if x[0] == "s"}
    if p.valu:
        if c.mfma and vw & c.r: n = max(n, 2)
        if c.vmem and sw & c.r: n = max(n, 5)
        if c.valu and sw & c.r: n = max(n, 4 if c.op.startswith(("v_readlane", "v_writelane")) else 2)
        if c.op.startswith(("v_readlane", "v_readfirstlane")) and vw & c.r: n = max(n, 1)
        if (c.op.startswith("v_permlane") or c.op.endswith("_dpp")) and vw & c.r: n = max(n, 2)
        if p.op.startswith(TRANS) and c.valu and not c.op.startswith(TRANS) and vw & c.r: n = max(n, 1)
        if p.op.startswith("v_dot2") and (c.valu or c.mfma) and vw & (c.r | c.w) and c.op != p.op: n = max(n, 3)
    if p.mfma:
        if c.mfma:
            if p.w & c.ab: n = max(n, p.passes + 4)
            if p.w & c.srcC and (p.w != c.srcC or p.passes != c.passes): n = max(n, p.passes + 2)
        elif (c.valu or c.vmem or c.ds) and p.w & (c.r | c.w): n = max(n, p.passes + 4)
        if c.valu and p.srcC & c.w: n = max(n, p.passes - 1)
    if p.salu and ("s", "m0") in p.w and c.lds_dma: n = max(n, 1)
    if p.store_data and p.store_data & c.w: n = max(n, 2)
    return n

def pad(lines):
    out = []; hist = []
    for text in lines:
        c = Ins(text)
        if c.label:
            out.append(text); continue
        dist = 0; req = 0
        for p in reversed(hist):
            req = max(req, need(p, c) - dist)
            dist += p.states
            if dist > 24: break
        while req > 0:
            k = min(req, 16)
            nop = Ins(f"s_nop {k-1}"); out.append("    " + nop.text); hist.append(nop); req -= k
        out.append("    " + text); hist.append(c)
    return out

def check_backedge(body):
    twice = [l.strip() for l in body + body]
    again = pad(twice)
    assert len(again) == len(twice), "loop back-edge needs wait states"

def interleave(main, extra, start=0, every=1, per=1):
    out = []; k = 0
    for i, m in enumerate(main):
        out.append(m)
        if i >= start and (i - start) % every == 0:
            for _ in range(per):
                if k < len(extra):
                    e = extra[k]; k += 1
                    out.extend(e if isinstance(e, list) else [e])
    for e in extra[k:]:
        out.extend(e if isinstance(e, list) else [e])
    return out
```

```python
import struct, sys
from asmdsl import pad, check_backedge, interleave

NAME = "recurrent_scan__spectral_fnet__glu_gated_bilinear__prompt"
WS_H, WS_AP, WS_RS, WS_SIZE = 0, 0x600000, 0x800000, 0x1000000
OOB = 0x40000000

def f32(x): return "0x%08x" % struct.unpack("<I", struct.pack("<f", x))[0]
def vr(a, n): return f"v[{a}:{a+n-1}]" if n > 1 else f"v{a}"

class Cfg:
    rot = 8
    st = "sc1"
    prio = 1
    stamps = False

def srd(A, reg, lo, hi, size):
    A(f"s_mov_b32 s{reg}, {lo}"); A(f"s_mov_b32 s{reg+1}, {hi}"); A(f"s_mov_b32 s{reg+2}, {size}"); A(f"s_mov_b32 s{reg+3}, 0x20000")

SLOT, WREG = 53248, 13312
MISC = 3*SLOT
L_M, L_R, L_CS = MISC, MISC + 512, MISC + 1024
K1_LDS = MISC + 2048

def k1(cfg):
    L = []; A = L.append
    A("s_cmp_ge_u32 s2, 256"); A("s_cbranch_scc1 K1_end")
    A("s_load_dwordx2 s[4:5], s[0:1], 0")
    A("s_load_dwordx4 s[8:11], s[0:1], 24")
    A("s_load_dwordx4 s[12:15], s[0:1], 48")
    A("s_load_dwordx2 s[6:7], s[0:1], 88")
    A("v_lshrrev_b32 v2, 6, v0"); A("v_and_b32 v1, 63, v0")
    A("s_and_b32 s22, s2, 7"); A("s_lshr_b32 s23, s2, 3")
    A("v_readfirstlane_b32 s19, v2")
    A("s_and_b32 s16, s22, 1"); A("s_lshl_b32 s16, s16, 3"); A("s_and_b32 s44, s23, 7"); A("s_add_u32 s16, s16, s44")
    A("s_lshr_b32 s44, s22, 1"); A("s_lshr_b32 s45, s23, 3"); A("s_lshl_b32 s17, s44, 2"); A("s_add_u32 s17, s17, s45")
    if cfg.rot == 8:
        A("s_lshl_b32 s45, s45, 1"); A("s_and_b32 s44, s44, 1"); A("s_add_u32 s18, s16, s45"); A("s_add_u32 s18, s18, s44"); A("s_and_b32 s18, s18, 7")
    elif cfg.rot in (2, 4):
        A("s_add_u32 s18, s16, s17"); A(f"s_lshl_b32 s18, s18, {1 if cfg.rot == 4 else 2}"); A("s_and_b32 s18, s18, 7")
    else:
        A("s_mov_b32 s18, 0")
    A("s_min_u32 s44, s17, 6"); A("s_mul_i32 s20, s17, 5"); A("s_add_u32 s20, s20, s44")
    A("s_cmp_lt_u32 s17, 6"); A("s_cselect_b32 s21, 6, 5")
    A("s_and_b32 s46, s19, 3")
    A("s_and_b32 s44, s46, 1"); A("s_lshr_b32 s45, s46, 1"); A("s_lshl_b32 s45, s45, 5"); A("s_add_u32 s44, s44, s45")
    A("s_lshl_b32 s47, s16, 1"); A("s_add_u32 s47, s47, s44")
    A("v_and_b32 v3, 31, v1"); A("v_lshrrev_b32 v4, 5, v1")
    A("v_lshrrev_b32 v5, 1, v3"); A("v_and_b32 v5, 7, v5"); A("v_xor_b32 v5, v5, v4")
    A("v_lshlrev_b32 v5, 4, v5")
    A("v_lshl_add_u32 v6, v3, 7, v5")
    A("s_mul_i32 s48, s46, 13312")
    A("v_add_u32 v6, s48, v6")
    A("v_lshrrev_b32 v7, 4, v1"); A("v_and_b32 v7, 1, v7")
    A("v_lshrrev_b32 v8, 2, v1"); A("v_and_b32 v8, 3, v8")
    A("v_lshl_add_u32 v9, v8, 1, v7")
    A("v_mul_u32_u24 v10, 26624, v4"); A("v_lshl_add_u32 v10, v7, 10, v10"); A("v_lshl_add_u32 v10, v8, 8, v10")
    A("v_and_b32 v11, 3, v1"); A("v_lshl_add_u32 v10, v11, 3, v10"); A("v_add_u32 v10, 5120, v10")
    A(f"s_mov_b32 s61, {SLOT}")
    A("s_cmp_ge_u32 s19, 4"); A("s_cbranch_scc1 K1_loader")
    L += k1_compute(cfg)
    A("K1_loader:")
    L += k1_loader(cfg)
    A("K1_end:")
    A("s_endpgm")
    return L

def k1_loader(cfg):
    L = []; A = L.append
    XO, DO, WO = 12, 16, 17
    SX, SW = 25, 29
    ACC = 32
    FR = 48
    T = 88
    A("v_lshrrev_b32 v40, 3, v1"); A("v_and_b32 v41, 7, v1")
    for i in range(4):
        A(f"v_add_u32 v42, {8*i}, v40"); A("v_lshrrev_b32 v43, 1, v42"); A("v_and_b32 v43, 7, v43"); A("v_xor_b32 v43, v43, v41")
        A("v_lshlrev_b32 v42, 16, v42"); A("v_lshl_add_u32 v42, v43, 4, v42")
        A("s_lshl_b32 s44, s47, 10"); A(f"s_sub_u32 s44, s44, {1024*i}")
        A(f"v_add_u32 v{XO+i}, s44, v42")
    A("s_lshl_b32 s44, s46, 3"); A("v_add_u32 v42, s44, v40")
    A("v_lshrrev_b32 v43, 1, v42"); A("v_and_b32 v43, 7, v43"); A("v_xor_b32 v43, v43, v41")
    A("v_and_b32 v42, 15, v42"); A("s_lshl_b32 s44, s17, 4"); A("v_add_u32 v42, s44, v42")
    A("s_cmp_lt_u32 s46, 2"); A("s_cselect_b32 s45, 256, 0")
    A("v_mov_b32 v44, s45"); A("v_cmp_eq_u32 vcc, 0, v42"); A("v_cndmask_b32 v42, v42, v44, vcc")
    A("v_lshlrev_b32 v42, 10, v42"); A(f"v_lshl_add_u32 v{DO}, v43, 4, v42")
    A("v_lshrrev_b32 v40, 4, v1"); A("v_and_b32 v41, 15, v1")
    A("s_lshl_b32 s44, s46, 2"); A("v_add_u32 v42, s44, v40"); A("v_mul_u32_u24 v42, 2752, v42")
    A("v_and_b32 v43, 1, v41"); A("v_lshl_add_u32 v42, v43, 4, v42")
    A("v_lshrrev_b32 v41, 1, v41"); A(f"v_mov_b32 v46, {OOB}")
    woff = [[1024, 2048], [3072, 0], [1024, 2048], [3072, 0]]
    for mat in range(2):
        A("v_lshlrev_b32 v43, 1, v40"); A(f"v_or_b32 v43, {mat}, v43"); A("v_xor_b32 v43, v43, v41")
        A("v_cmp_gt_u32 vcc, s21, v43")
        A("v_add_u32 v43, s20, v43"); A("v_lshl_add_u32 v43, v43, 5, v42"); A("v_cndmask_b32 v43, v46, v43, vcc")
        for q in range(4):
            A(f"v_add_u32 v{WO+2*q+mat}, {q*44032 + 4096 - woff[q][mat]}, v43")
    for q in range(4): A(f"v_xor_b32 v{SX+q}, {32*q}, v6")
    for n in range(3):
        A("s_mul_i32 s44, s46, 3"); A(f"s_add_u32 s44, s44, {n}"); A("s_lshr_b32 s45, s44, 1"); A("s_and_b32 s44, s44, 1"); A("s_lshl_b32 s44, s44, 11")
        A("v_xor_b32 v43, s45, v9"); A("v_lshl_add_u32 v43, v43, 5, v10"); A(f"v_add_u32 v{SW+n}, s44, v43")
        A("s_lshl_b32 s45, s45, 7"); A(f"s_add_u32 s{56+n}, s45, {L_CS}")
    for r in range(10): A(f"v_mov_b32 v{ACC+r}, 0")
    A("v_lshlrev_b32 v42, 2, v1"); A("s_lshl_b32 s44, s46, 8"); A(f"s_add_u32 s44, s44, {L_CS}"); A("v_add_u32 v42, s44, v42")
    A(f"ds_write_b32 v42, v{ACC}")
    A("s_waitcnt lgkmcnt(0)")
    srd(A, 24, "s4", "s5", 2097152)
    A("s_cmp_lt_u32 s46, 2"); A("s_cselect_b32 s28, s8, s10"); A("s_cselect_b32 s29, s9, s11"); A("s_mov_b32 s30, 524288"); A("s_mov_b32 s31, 0x20000")
    A("s_sub_u32 s32, s12, 4096"); A("s_subb_u32 s33, s13, 0"); A(f"s_mov_b32 s34, {1409024+4096}"); A("s_mov_b32 s35, 0x20000")
    A("s_sub_u32 s36, s14, 4096"); A("s_subb_u32 s37, s15, 0"); A(f"s_mov_b32 s38, {1409024+4096}"); A("s_mov_b32 s39, 0x20000")
    srd(A, 40, "s6", "s7", WS_SIZE)
    A("s_mov_b32 s49, s48")
    A("s_mov_b32 s52, 0")
    def dma():
        D = []
        D.append(["s_lshl_b32 s50, s18, 7", "s_mul_i32 s51, s18, 176128", "s_cmp_ge_u32 s52, 8", f"s_cselect_b32 s50, {OOB}, s50", f"s_cselect_b32 s51, {OOB}, s51",
                  "s_mov_b32 m0, s49", f"buffer_load_dwordx4 v{XO}, s[24:27], s50 offen lds"])
        for i in range(1, 4): D.append([f"buffer_load_dwordx4 v{XO+i}, s[24:27], s50 offen offset:{1024*i} lds"])
        D.append(["s_add_u32 m0, s49, 4096", f"buffer_load_dwordx4 v{DO}, s[28:31], s50 offen lds"])
        k = 5
        for q in range(4):
            for mat in range(2):
                pre = [f"s_add_u32 m0, s49, {1024*k}"] if woff[q][mat] == 0 else []
                off = f" offset:{woff[q][mat]}" if woff[q][mat] else ""
                D.append(pre + [f"buffer_load_dwordx4 v{WO+2*q+mat}, s[{32+4*mat}:{35+4*mat}], s51 offen{off} lds"])
                k += 1
        D.append(["s_add_u32 s18, s18, 1", "s_and_b32 s18, s18, 7", "s_add_u32 s52, s52, 1",
                  f"s_add_u32 s49, s49, {SLOT}", f"s_cmp_ge_u32 s49, {3*SLOT}", f"s_cselect_b32 s53, {3*SLOT}, 0", "s_sub_u32 s49, s49, s53"])
        return D
    for s in range(2):
        for d in dma(): L += d
    A("s_mov_b32 s54, 0")
    A("s_mov_b32 s55, 8")
    B = []; C = B.append
    C("s_waitcnt vmcnt(13)"); C("s_barrier")
    order = [("x", 0), ("w", 0, 0), ("x", 1), ("w", 1, 0), ("w", 2, 0), ("x", 2), ("w", 0, 1), ("x", 3), ("w", 1, 1), ("w", 2, 1)]
    reads = []; cnt = []
    for k, f in enumerate(order):
        d = FR + 4*k
        if f[0] == "x":
            reads.append(f"ds_read_b128 {vr(d,4)}, v{SX+f[1]}"); cnt.append(1)
        else:
            reads.append(f"ds_read_b64_tr_b16 {vr(d,2)}, v{SW+f[1]} offset:{f[2]*4096}")
            reads.append(f"ds_read_b64_tr_b16 {vr(d+2,2)}, v{SW+f[1]} offset:{f[2]*4096+WREG}"); cnt.append(2)
    B += reads
    C(f"s_add_u32 s54, s54, 1"); C("s_cmp_eq_u32 s54, 3"); C(f"s_cselect_b32 s53, {(-2*SLOT) & 0xffffffff}, s61"); C("s_cselect_b32 s54, 0, s54")
    V = []
    left = sum(cnt)
    for k, f in enumerate(order):
        left -= cnt[k]; d = FR + 4*k
        V.append(f"s_waitcnt lgkmcnt({min(left, 15)})")
        for r in range(4):
            lo, hi = T + 2*(r % 2), T + 2*(r % 2) + 1
            V.append(f"v_lshlrev_b32 v{lo}, 16, v{d+r}"); V.append(f"v_and_b32 v{hi}, 0xffff0000, v{d+r}")
            if f[0] == "x":
                V.append(f"v_add_f32 v{ACC}, v{ACC}, v{lo}"); V.append(f"v_add_f32 v{ACC+1}, v{ACC+1}, v{hi}")
                V.append(f"v_fmac_f32 v{ACC+2}, v{lo}, v{lo}"); V.append(f"v_fmac_f32 v{ACC+3}, v{hi}, v{hi}")
            else:
                a = ACC + 4 + 2*f[1]
                V.append(f"v_add_f32 v{a}, v{a}, v{lo}"); V.append(f"v_add_f32 v{a+1}, v{a+1}, v{hi}")
    for r in range(SX, SX+7): V.append(f"v_add_u32 v{r}, s53, v{r}")
    D = dma()
    tail = D.pop()
    B += interleave(V, D, start=0, every=14)
    B += tail
    C("s_sub_u32 s55, s55, 1"); C("s_cmp_lg_u32 s55, 0"); C("s_cbranch_scc1 K1_lloop")
    B = [l.strip() for l in pad(B)]; check_backedge(B)
    A("K1_lloop:"); L += B
    for a in range(ACC, ACC+10, 2):
        A(f"v_add_f32 v{a}, v{a}, v{a+1}"); A(f"v_mov_b32 v{a+1}, v{a}")
    for a in range(ACC, ACC+10, 2):
        A(f"v_permlane32_swap_b32 v{a}, v{a+1}")
    for a in range(ACC, ACC+10, 2):
        A(f"v_add_f32 v{a}, v{a}, v{a+1}")
    A(f"v_mul_f32 v{ACC}, {f32(1/512)}, v{ACC}")
    A(f"v_mul_f32 v{ACC+1}, v{ACC}, v{ACC}")
    A(f"v_fma_f32 v{ACC+2}, v{ACC+2}, s60, -v{ACC+1}")
    A(f"v_max_f32 v{ACC+2}, 0, v{ACC+2}")
    A(f"v_add_f32 v{ACC+2}, {f32(1e-5)}, v{ACC+2}")
    A(f"v_rsq_f32 v{ACC+3}, v{ACC+2}")
    A("v_cmp_eq_u32 vcc, 0, v4")
    A(f"v_cndmask_b32 v{ACC+1}, v{ACC+3}, v{ACC}, vcc")
    A("v_lshlrev_b32 v42, 2, v3"); A("v_lshl_add_u32 v43, v4, 9, v42"); A("s_lshl_b32 s44, s46, 7"); A(f"s_add_u32 s44, s44, {L_M}"); A("v_add_u32 v43, s44, v43")
    A(f"ds_write_b32 v43, v{ACC+1}")
    A("s_mov_b32 exec_hi, 0")
    for n in range(3):
        A(f"v_add_u32 v43, s{56+n}, v42"); A(f"ds_add_f32 v43, v{ACC+4+2*n}")
    A("s_waitcnt vmcnt(0) lgkmcnt(0)")
    A("s_barrier")
    A("s_cmp_lg_u32 s17, 0"); A("s_cbranch_scc1 K1_end")
    A(f"v_mul_f32 v{ACC+3}, v{ACC+3}, v{ACC+3}")
    A("s_lshl_b32 s44, s47, 7"); A(f"s_add_u32 s44, s44, {WS_RS}")
    A(f"buffer_store_dword v{ACC+3}, v42, s[40:43], s44 offen {cfg.st}")
    A("s_endpgm")
    L.insert(0, f"s_mov_b32 s60, {f32(1/512)}")
    return L

def k1_compute(cfg):
    L = []; A = L.append
    AX, AD, AW = 48, 52, 56
    FB = [64, 96]
    ACC = 128
    WR, WI = 32, 40
    if cfg.prio: A("s_setprio 1")
    for q in range(4): A(f"v_xor_b32 v{AX+q}, {32*q}, v6")
    A("v_lshrrev_b32 v12, 3, v3"); A("v_mul_u32_u24 v12, 13312, v12"); A("v_and_b32 v13, 7, v3"); A("v_lshl_add_u32 v12, v13, 7, v12")
    A("v_add_u32 v12, v12, v5"); A("v_add_u32 v12, 4096, v12")
    for q in range(4): A(f"v_xor_b32 v{AD+q}, {32*q}, v12")
    for u in range(6):
        A(f"v_xor_b32 v12, {u}, v9"); A(f"v_lshl_add_u32 v{AW+u}, v12, 5, v10")
    for r in range(112): A(f"v_mov_b32 v{ACC+r}, 0")
    A("v_cvt_f32_u32 v12, v3"); A(f"v_mul_f32 v12, {f32(-1/32)}, v12")
    A("v_lshlrev_b32 v13, 2, v4"); A("v_cvt_f32_u32 v13, v13"); A("v_mul_f32 v13, v12, v13")
    for kap in range(2):
        for n in range(4):
            for b in range(2):
                idx = 2*n + b; j = 16*kap + 8*(idx//4) + idx % 4
                A(f"v_fmamk_f32 v{14+b}, v12, {f32(j)}, v13")
                A(f"v_cos_f32 v{16+b}, v{14+b}"); A(f"v_sin_f32 v{18+b}, v{14+b}")
            A(f"v_cvt_pk_bf16_f32 v{WR+4*kap+n}, v16, v17"); A(f"v_cvt_pk_bf16_f32 v{WI+4*kap+n}, v18, v19")
    A("s_waitcnt lgkmcnt(0)")
    srd(A, 40, "s6", "s7", WS_SIZE)
    def reads(buf, q):
        R = [f"ds_read_b128 {vr(buf,4)}, v{AX+q}"]
        for u in range(6):
            R.append(f"ds_read_b64_tr_b16 {vr(buf+8+4*u,2)}, v{AW+u} offset:{q*2048}")
            R.append(f"ds_read_b64_tr_b16 {vr(buf+10+4*u,2)}, v{AW+u} offset:{q*2048+WREG}")
        R.append(f"ds_read_b128 {vr(buf+4,4)}, v{AD+q}")
        return R
    A("s_mov_b32 s54, 0"); A("s_mov_b32 s55, 8")
    A("s_barrier")
    L += reads(FB[0], 0)
    B = []; C = B.append
    for q in range(4):
        cur, nxt = FB[q % 2], FB[(q+1) % 2]
        C("s_waitcnt lgkmcnt(0)")
        if q == 3:
            C("s_cmp_eq_u32 s55, 1"); C("s_cbranch_scc1 K1_nobar"); C("s_barrier"); C("K1_nobar:")
        M = [f"v_mfma_f32_32x32x16_bf16 {vr(ACC+16*u,16)}, {vr(cur+8+4*u,4)}, {vr(cur,4)}, {vr(ACC+16*u,16)}" for u in range(6)]
        M.append(f"v_mfma_f32_32x32x16_bf16 {vr(ACC+96,16)}, {vr(cur,4)}, {vr(cur+4,4)}, {vr(ACC+96,16)}")
        F = reads(nxt, (q+1) % 4)
        if q == 1:
            F += ["s_add_u32 s54, s54, 1", "s_cmp_eq_u32 s54, 3", f"s_cselect_b32 s53, {(-2*SLOT) & 0xffffffff}, s61", "s_cselect_b32 s54, 0, s54"]
        if q == 2:
            F += [f"v_add_u32 v{r}, s53, v{r}" for r in range(AX, AX+14)]
        if q == 3:
            F += ["s_sub_u32 s55, s55, 1", "s_cmp_lg_u32 s55, 0"]
        B += interleave(M, F, per=4 if q == 2 else 3)
    C("s_cbranch_scc1 K1_cloop")
    B = [l.strip() for l in pad(B)]; check_backedge(B)
    A(".p2align 3"); A("K1_cloop:"); L += B
    A("s_waitcnt lgkmcnt(0)")
    A("s_barrier")
    RR, ZB, P, Q, CS, T = 240, 8, 96, 112, [64, 80], 16
    A("s_lshl_b32 s44, s46, 7")
    A("v_lshl_add_u32 v12, v3, 2, s44"); A("v_lshl_add_u32 v13, v4, 4, s44"); A("v_lshlrev_b32 v14, 4, v4")
    for jj in range(4): A(f"ds_read_b128 {vr(RR+4*jj,4)}, v13 offset:{L_R - MISC + 32*jj + 0}".replace("v13 offset:", "v60 offset:"))
    A(f"ds_read_b32 v2, v61 offset:{L_M - MISC}")
    def csreads(u): return [f"ds_read_b128 {vr(CS[u % 2]+4*jj,4)}, v62 offset:{L_CS - MISC + 128*u + 32*jj}" for jj in range(4)]
    pos = len(L) - 5
    L[pos:pos] = [f"v_add_u32 v60, {MISC}, v13", f"v_add_u32 v61, {MISC}, v12", f"v_add_u32 v62, {MISC}, v14"]
    L += csreads(0)
    A("s_waitcnt lgkmcnt(5)")
    Z = ACC + 96
    for r in range(16): A(f"v_mul_f32 v{Z+r}, v{Z+r}, v{RR+r}")
    for n in range(8): A(f"v_cvt_pk_bf16_f32 v{ZB+n}, v{Z+2*n}, v{Z+2*n+1}")
    A(f"v_mfma_f32_32x32x16_bf16 {vr(P,16)}, {vr(WR,4)}, {vr(ZB,4)}, 0")
    A(f"v_mfma_f32_32x32x16_bf16 {vr(Q,16)}, {vr(WI,4)}, {vr(ZB,4)}, 0")
    A(f"v_mfma_f32_32x32x16_bf16 {vr(P,16)}, {vr(WR+4,4)}, {vr(ZB+4,4)}, {vr(P,16)}")
    A(f"v_mfma_f32_32x32x16_bf16 {vr(Q,16)}, {vr(WI+4,4)}, {vr(ZB+4,4)}, {vr(Q,16)}")
    A("v_lshlrev_b32 v63, 4, v1")
    A("s_mul_i32 s50, s47, 86"); A("s_add_u32 s50, s50, s20"); A("s_lshl_b32 s50, s50, 10")
    if WS_H: A(f"s_add_u32 s50, s50, {WS_H}")
    def glu(u):
        a = ACC + 16*u; cs = CS[u % 2]; t = T + 4*(u % 4)
        if u < 5: L.extend(csreads(u+1))
        A(f"s_waitcnt lgkmcnt({4 if u < 5 else 0})")
        for r in range(16): A(f"v_fma_f32 v{a+r}, -v2, v{cs+r}, v{a+r}")
        for r in range(8): A(f"v_mul_f32 v{a+r}, v{a+r}, v{a+8+r}")
        for n in range(4): A(f"v_cvt_pk_bf16_f32 v{t+n}, v{a+2*n}, v{a+2*n+1}")
        A(f"buffer_store_dwordx4 {vr(t,4)}, v63, s[40:43], s50 offen {cfg.st}")
        A("s_add_u32 s50, s50, 1024")
    glu(0)
    for n in range(8):
        A(f"v_permlane16_swap_b32 v{P+2*n}, v{P+2*n+1}"); A(f"v_permlane16_swap_b32 v{Q+2*n}, v{Q+2*n+1}")
    A("v_lshlrev_b32 v12, 10, v4"); A("v_lshl_add_u32 v12, v7, 8, v12"); A("v_and_b32 v13, 15, v1"); A("v_lshl_add_u32 v12, v13, 4, v12")
    A("s_lshl_b32 s44, s46, 2"); A("v_add_u32 v12, s44, v12")
    for n in range(8):
        A(f"v_sub_f32 v{P+2*n}, v{P+2*n}, v{Q+2*n+1}"); A(f"v_add_f32 v{P+2*n+1}, v{P+2*n+1}, v{Q+2*n}")
        A(f"v_cvt_pk_bf16_f32 v{Q+2*n}, v{P+2*n}, v{P+2*n+1}")
        A(f"ds_write_b32 v12, v{Q+2*n} offset:{(8*(n//2) + 2*(n % 2))*256}")
    A("s_waitcnt lgkmcnt(0)")
    A("s_barrier")
    A("s_lshl_b32 s44, s46, 11"); A("v_add_u32 v12, s44, v63")
    A(f"ds_read_b128 {vr(P,4)}, v12"); A(f"ds_read_b128 {vr(P+4,4)}, v12 offset:1024")
    A("v_lshrrev_b32 v12, 4, v1"); A("v_lshlrev_b32 v12, 16, v12"); A("v_lshl_add_u32 v12, v13, 4, v12")
    A("s_lshl_b32 s44, s46, 19"); A("s_lshl_b32 s45, s16, 12"); A("s_add_u32 s44, s44, s45"); A("s_lshl_b32 s45, s17, 8"); A("s_add_u32 s44, s44, s45")
    A(f"s_add_u32 s44, s44, {WS_AP}"); A("s_add_u32 s45, s44, 0x40000")
    A("s_waitcnt lgkmcnt(0)")
    A(f"buffer_store_dwordx4 {vr(P,4)}, v12, s[40:43], s44 offen {cfg.st}")
    A(f"buffer_store_dwordx4 {vr(P+4,4)}, v12, s[40:43], s45 offen {cfg.st}")
    for u in range(1, 5): glu(u)
    A("s_cmp_eq_u32 s21, 5"); A("s_cbranch_scc1 K1_end")
    glu(5)
    A("s_endpgm")
    return L

K2_RING, K2_X, K2_EX = 0, 65536, 73728
K2_LDS = K2_EX + 16384

def k2(cfg):
    L = []; A = L.append
    ACC0, ACC1, Y = 16, 32, 48
    HR, AP, MF, WF = 64, 128, 160, [192, 200]
    XF, T = 208, 224
    A("s_cmp_ge_u32 s2, 256"); A("s_cbranch_scc1 K2_end")
    A("s_load_dwordx2 s[4:5], s[0:1], 0")
    A("s_load_dwordx4 s[8:11], s[0:1], 64")
    A("s_load_dwordx2 s[6:7], s[0:1], 88")
    A("v_lshrrev_b32 v2, 6, v0"); A("v_and_b32 v1, 63, v0")
    A("s_and_b32 s22, s2, 7"); A("s_lshr_b32 s23, s2, 3")
    A("v_readfirstlane_b32 s19, v2")
    A("s_and_b32 s17, s23, 7"); A("s_lshr_b32 s23, s23, 3")
    A("s_lshl_b32 s22, s22, 1"); A("s_lshr_b32 s44, s23, 1"); A("s_add_u32 s22, s22, s44")
    A("s_sub_u32 s44, 32, s22"); A("s_cmp_eq_u32 s22, 0"); A("s_cselect_b32 s44, 16, s44")
    A("s_and_b32 s23, s23, 1"); A("s_cmp_eq_u32 s23, 0"); A("s_cselect_b32 s16, s22, s44")
    A("s_lshr_b32 s20, s19, 1"); A("s_and_b32 s21, s19, 1")
    A("s_lshl_b32 s47, s21, 5"); A("s_add_u32 s47, s47, s16")
    A("v_and_b32 v3, 31, v1"); A("v_lshrrev_b32 v4, 5, v1")
    A("s_lshl_b32 s44, s17, 6"); A("s_lshl_b32 s45, s20, 5"); A("s_add_u32 s46, s44, s45")
    A("v_add_u32 v5, s46, v3")
    A("v_sub_u32 v6, 512, v5"); A("v_and_b32 v6, 255, v6")
    A("s_sub_u32 s44, 32, s16"); A("s_and_b32 s44, s44, 31"); A(f"s_mov_b32 s49, {f32(-1/2048)}")
    A("s_cmp_lt_u32 s17, 4"); A("s_cselect_b32 s48, s16, s44"); A("s_cselect_b64 vcc, -1, 0"); A(f"s_cselect_b32 s49, {f32(1/2048)}, s49")
    A("v_cndmask_b32 v6, v6, v5, vcc")
    A("v_lshlrev_b32 v6, 4, v6"); A("v_lshl_add_u32 v6, v4, 12, v6")
    A("v_cmp_eq_u32 vcc, 0, v5"); A(f"v_mov_b32 v7, {OOB}"); A("v_cndmask_b32 v6, v6, v7, vcc")
    A("s_lshl_b32 s48, s48, 16"); A(f"s_add_u32 s48, s48, {WS_AP}")
    A("v_lshrrev_b32 v7, 2, v1"); A("v_lshrrev_b32 v8, 2, v7"); A("v_and_b32 v9, 3, v1"); A("v_xor_b32 v8, v8, v9"); A("v_and_b32 v8, 3, v8")
    A("v_lshlrev_b32 v7, 16, v7"); A("v_lshl_add_u32 v7, v8, 4, v7")
    A("s_lshl_b32 s44, s47, 10"); A("s_lshl_b32 s45, s46, 1"); A("s_add_u32 s44, s44, s45"); A("v_add_u32 v7, s44, v7")
    A("v_add_u32 v8, 0x100000, v7")
    A("v_lshrrev_b32 v9, 3, v1"); A("v_and_b32 v10, 7, v1"); A("v_lshlrev_b32 v11, 1, v9"); A("v_and_b32 v11, 4, v11"); A("v_xor_b32 v10, v10, v11")
    A("v_lshlrev_b32 v9, 10, v9"); A("v_lshl_add_u32 v9, v10, 4, v9")
    A("s_lshl_b32 s44, s21, 13"); A("s_lshl_b32 s45, s17, 7"); A("s_add_u32 s44, s44, s45"); A("v_add_u32 v9, s44, v9")
    A("v_lshlrev_b32 v10, 4, v1")
    A("s_mul_i32 s50, s20, 704512")
    A("s_mul_i32 s51, s47, 86"); A("s_mul_i32 s44, s20, 43"); A("s_add_u32 s51, s51, s44"); A("s_lshl_b32 s51, s51, 10")
    if WS_H: A(f"s_add_u32 s51, s51, {WS_H}")
    A("s_lshl_b32 s52, s20, 15"); A("s_lshl_b32 s44, s21, 10"); A("s_add_u32 s53, s52, s44")
    A("v_lshlrev_b32 v11, 2, v3"); A("s_lshl_b32 s54, s47, 7"); A(f"s_add_u32 s54, s54, {WS_RS}")
    A("s_lshl_b32 s55, s19, 11"); A(f"s_add_u32 s55, s55, {K2_X}")
    A("s_waitcnt lgkmcnt(0)")
    srd(A, 24, "s4", "s5", 2097152); srd(A, 28, "s8", "s9", 1409024); srd(A, 32, "s10", "s11", 2097152); srd(A, 40, "s6", "s7", WS_SIZE)
    loads = []
    for k in range(8):
        loads.append([f"buffer_load_dwordx4 {vr(AP+4*k,4)}, v6, s[40:43], s48 offen", "s_add_u32 s48, s48, 8192"])
    loads.append(["s_mov_b32 m0, s55", "buffer_load_dwordx4 v7, s[24:27], 0 offen lds"])
    loads.append(["s_add_u32 m0, s55, 1024", "buffer_load_dwordx4 v8, s[24:27], 0 offen lds"])
    loads.append(["buffer_load_dword v2, v11, s[40:43], s54 offen"])
    def step_loads(st):
        return [[f"s_add_u32 m0, s53, {(st % 16)*2048}", "buffer_load_dwordx4 v9, s[28:31], s50 offen lds", "s_add_u32 s50, s50, 16384"],
                [f"buffer_load_dwordx4 {vr(HR+4*(st % 16),4)}, v10, s[40:43], s51 offen", "s_add_u32 s51, s51, 1024"]]
    AHEAD = 12
    for st in range(AHEAD): loads += step_loads(st)
    G = []; g = G.append
    g("v_lshrrev_b32 v12, 2, v1"); g("v_and_b32 v12, 3, v12")
    g("v_lshl_add_u32 v13, v4, 2, v12"); g("v_lshlrev_b32 v13, 7, v13")
    g("v_lshrrev_b32 v14, 4, v1"); g("v_and_b32 v14, 1, v14"); g("v_lshl_add_u32 v13, v14, 5, v13")
    g("v_and_b32 v14, 3, v1"); g("v_lshl_add_u32 v13, v14, 3, v13"); g("v_add_u32 v13, s52, v13")
    g("v_lshrrev_b32 v12, 1, v12"); g("v_xor_b32 v12, s20, v12")
    g("v_lshl_add_u32 v14, v12, 6, v13")
    g("v_xor_b32 v15, 64, v14")
    for r in range(32): g(f"v_mov_b32 v{ACC0+r}, 0")
    g(f"v_lshl_add_u32 v{T}, v3, 6, s47"); g(f"v_cvt_f32_u32 v{T}, v{T}"); g(f"v_mul_f32 v{T}, s49, v{T}")
    g(f"v_lshlrev_b32 v{T+1}, 1, v4"); g(f"v_cvt_f32_u32 v{T+1}, v{T+1}"); g(f"v_mul_f32 v{T+1}, v{T}, v{T+1}")
    for k in range(8):
        for w4 in range(4):
            c = 4*k + [0, 1, 32, 33][w4]; a = T + 2 + 3*(w4 % 2)
            g(f"v_fmamk_f32 v{a}, v{T}, {f32(c)}, v{T+1}")
            g(f"v_cos_f32 v{a+1}, v{a}"); g(f"v_sin_f32 v{a+2}, v{a}")
            if w4 % 2 == 1:
                g(f"v_cvt_pk_bf16_f32 v{MF+4*k+w4-1}, v{T+3}, v{T+4}")
                g(f"v_cvt_pk_bf16_f32 v{MF+4*k+w4}, v{T+6}, v{T+7}")
    for d in loads[:10]: L += d
    L += interleave(G, loads[10:], start=8, every=7)
    younger = len(loads) - 8
    A(f"s_waitcnt vmcnt({younger})")
    for k in range(8):
        A(f"v_mfma_f32_32x32x16_bf16 {vr(Y,16)}, {vr(AP+4*k,4)}, {vr(MF+4*k,4)}, {vr(Y,16) if k else 0}")
    A(f"s_waitcnt vmcnt({2*AHEAD})")
    A("v_lshrrev_b32 v12, 2, v3"); A("v_and_b32 v12, 3, v12"); A("v_lshlrev_b32 v12, 4, v12")
    A("v_lshl_add_u32 v12, v3, 6, v12"); A("v_lshl_add_u32 v12, v4, 3, v12"); A("v_add_u32 v12, s55, v12")
    for jj in range(4):
        A(f"v_xor_b32 v{T+8+jj}, {16*jj}, v12"); A(f"ds_read_b64 {vr(T+2*jj,2)}, v{T+8+jj}")
    A("s_waitcnt lgkmcnt(0)")
    for n in range(8):
        A(f"v_lshlrev_b32 v{XF+2*n}, 16, v{T+n}"); A(f"v_and_b32 v{XF+2*n+1}, 0xffff0000, v{T+n}")
    for r in range(16): A(f"v_mul_f32 v{Y+r}, v{Y+r}, v2")
    A(f"v_mul_f32 v2, {f32(-1.4426950408889634)}, v2")
    def wreads(st):
        b = WF[st % 2]; o = (st % 16)*2048
        return [f"ds_read_b64_tr_b16 {vr(b,2)}, v14 offset:{o}", f"ds_read_b64_tr_b16 {vr(b+2,2)}, v14 offset:{o+1024}",
                f"ds_read_b64_tr_b16 {vr(b+4,2)}, v15 offset:{o}", f"ds_read_b64_tr_b16 {vr(b+6,2)}, v15 offset:{o+1024}"]
    NST = 43
    for c0 in range(0, NST, 4):
        steps = list(range(c0, min(c0+4, NST)))
        issued = min(NST, c0 + AHEAD)
        A(f"s_waitcnt vmcnt({2*(issued - steps[-1] - 1)})")
        A("s_barrier")
        L += wreads(c0)
        for st in steps:
            if st + AHEAD < NST:
                for d in step_loads(st + AHEAD): L += d
            if st != steps[-1]:
                L += wreads(st+1); A("s_waitcnt lgkmcnt(4)")
            else:
                A("s_waitcnt lgkmcnt(0)")
            b = WF[st % 2]; h = HR + 4*(st % 16)
            A(f"v_mfma_f32_32x32x16_bf16 {vr(ACC1,16)}, {vr(b+4,4)}, {vr(h,4)}, {vr(ACC1,16)}")
            A(f"v_mfma_f32_32x32x16_bf16 {vr(ACC0,16)}, {vr(b,4)}, {vr(h,4)}, {vr(ACC0,16)}")
    A("s_lshl_b32 s44, s19, 12"); A("s_xor_b32 s45, s44, 8192"); A(f"s_add_u32 s44, s44, {K2_EX}"); A(f"s_add_u32 s45, s45, {K2_EX}")
    A("v_add_u32 v13, s44, v10"); A("v_add_u32 v14, s45, v10")
    for q in range(4): A(f"ds_write_b128 v13, {vr(ACC1+4*q,4)} offset:{1024*q}")
    A("s_waitcnt lgkmcnt(0)"); A("s_barrier")
    for q in range(4): A(f"ds_read_b128 {vr(ACC1+4*q,4)}, v14 offset:{1024*q}")
    E = HR
    for q in range(4):
        A(f"s_waitcnt lgkmcnt({3-q})")
        for r in range(4*q, 4*q+4): A(f"v_add_f32 v{ACC0+r}, v{ACC0+r}, v{ACC1+r}")
        for r in range(4*q, 4*q+4): A(f"v_mul_f32 v{E+r}, v{ACC0+r}, v2")
        for r in range(4*q, 4*q+4): A(f"v_exp_f32 v{E+r}, v{E+r}")
        for r in range(4*q, 4*q+4): A(f"v_mul_f32 v{ACC0+r}, v{ACC0+r}, v{Y+r}")
        for r in range(4*q, 4*q+4): A(f"v_add_f32 v{E+r}, 1.0, v{E+r}")
        for r in range(4*q, 4*q+4): A(f"v_rcp_f32 v{E+r}, v{E+r}")
        for r in range(4*q, 4*q+4): A(f"v_fma_f32 v{ACC0+r}, v{ACC0+r}, v{E+r}, v{XF+r}")
        A(f"v_cvt_pk_bf16_f32 v{T+2*q}, v{ACC0+4*q}, v{ACC0+4*q+1}"); A(f"v_cvt_pk_bf16_f32 v{T+2*q+1}, v{ACC0+4*q+2}, v{ACC0+4*q+3}")
        A(f"ds_write_b64 v{T+8+q}, {vr(T+2*q,2)}")
    A("v_add_u32 v13, s55, v10")
    A("s_waitcnt lgkmcnt(0)")
    A(f"ds_read_b128 {vr(E,4)}, v13"); A(f"ds_read_b128 {vr(E+4,4)}, v13 offset:1024")
    A("s_waitcnt lgkmcnt(1)")
    A(f"buffer_store_dwordx4 {vr(E,4)}, v7, s[32:35], 0 offen")
    A("s_waitcnt lgkmcnt(0)")
    A(f"buffer_store_dwordx4 {vr(E+4,4)}, v8, s[32:35], 0 offen")
    A("K2_end:")
    A("s_endpgm")
    return L

def kernel(name, body):
    return [f".globl {name}", ".p2align 8", f".type {name},@function", f"{name}:"] + pad(body)

def desc(name, nv):
    return f""".amdhsa_kernel {name}
  .amdhsa_next_free_vgpr {nv}
  .amdhsa_next_free_sgpr 96
  .amdhsa_accum_offset {nv}
  .amdhsa_group_segment_fixed_size 0
  .amdhsa_kernarg_size 96
  .amdhsa_user_sgpr_count 2
  .amdhsa_user_sgpr_kernarg_segment_ptr 1
  .amdhsa_system_sgpr_workgroup_id_x 1
.end_amdhsa_kernel
"""

def build(cfg, extra_launch="", extra_code=None, extra_desc=""):
    ref = open(f"cdna_kernels/{NAME}.s.ref").read().split("\n")
    head = [l for l in ref if l.startswith(";   offset") or l.startswith("; Kernarg")]
    out = head + ([extra_launch] if extra_launch else []) + [f"; @launch kernel=fnet_k1_kernel grid=(256,1,1) block=(512,1,1) lds={K1_LDS}",
                  f"; @launch kernel=fnet_k2_kernel grid=(256,1,1) block=(256,1,1) lds={K2_LDS}",
                  '.amdgcn_target "amdgcn-amd-amdhsa--gfx950"', ".text"]
    out += kernel("fnet_k1_kernel", k1(cfg)) + kernel("fnet_k2_kernel", k2(cfg)) + (extra_code or [])
    out += ['.section .rodata,"a"', ".p2align 6", desc("fnet_k1_kernel", 256), ".p2align 6", desc("fnet_k2_kernel", 256), extra_desc]
    return "\n".join(out) + "\n"

if __name__ == "__main__":
    cfg = Cfg()
    for a in sys.argv[2:]:
        k, v = a.split("="); setattr(cfg, k, type(getattr(cfg, k))(v) if not isinstance(getattr(cfg, k), bool) else v == "1")
    open(sys.argv[1], "w").write(build(cfg))
```

```python
import struct, sys
from asmdsl import pad, check_backedge, interleave

NAME = "recurrent_scan__spectral_fnet__glu_gated_bilinear__prompt"
WS_H, WS_AP, WS_RS, WS_SIZE = 0, 0x600000, 0x800000, 0x1000000
OOB = 0x40000000

def f32(x): return "0x%08x" % struct.unpack("<I", struct.pack("<f", x))[0]
def vr(a, n): return f"v[{a}:{a+n-1}]" if n > 1 else f"v{a}"

class Cfg:
    rot = 8
    st = "sc1"
    prio = 1
    stamps = False

def srd(A, reg, lo, hi, size):
    A(f"s_mov_b32 s{reg}, {lo}"); A(f"s_mov_b32 s{reg+1}, {hi}"); A(f"s_mov_b32 s{reg+2}, {size}"); A(f"s_mov_b32 s{reg+3}, 0x20000")

WS_ST = 0x900000
def stamp(cfg, A, i):
    if cfg.stamps: A(f"s_memtime s[{64+2*i}:{65+2*i}]")
def rstamp(cfg, A, i):
    if cfg.stamps: A(f"s_memrealtime s[{64+2*i}:{65+2*i}]")
def dump(cfg, A, kern, n=16):
    if not cfg.stamps: return
    A("s_waitcnt lgkmcnt(0)")
    A("s_mov_b64 exec, -1")
    for i in range(n): A(f"v_mov_b32 v{16+i}, s{64+2*i}")
    A("s_lshl_b32 s44, s2, 3"); A("s_add_u32 s44, s44, s19"); A("s_lshl_b32 s44, s44, 6"); A(f"s_add_u32 s44, s44, {WS_ST + kern*0x20000}")
    A("v_mov_b32 v12, 0")
    for q in range(n//4): A(f"buffer_store_dwordx4 v[{16+4*q}:{19+4*q}], v12, s[40:43], s44 offen offset:{16*q}")

SLOT, WREG = 53248, 13312
MISC = 3*SLOT
L_M, L_R, L_CS = MISC, MISC + 512, MISC + 1024
K1_LDS = MISC + 2048

def k1(cfg):
    L = []; A = L.append
    A("s_cmp_ge_u32 s2, 256"); A("s_cbranch_scc1 K1_end")
    rstamp(cfg, A, 0); stamp(cfg, A, 1)
    A("s_load_dwordx2 s[4:5], s[0:1], 0")
    A("s_load_dwordx4 s[8:11], s[0:1], 24")
    A("s_load_dwordx4 s[12:15], s[0:1], 48")
    A("s_load_dwordx2 s[6:7], s[0:1], 88")
    A("v_lshrrev_b32 v2, 6, v0"); A("v_and_b32 v1, 63, v0")
    A("s_and_b32 s22, s2, 7"); A("s_lshr_b32 s23, s2, 3")
    A("v_readfirstlane_b32 s19, v2")
    A("s_and_b32 s16, s22, 1"); A("s_lshl_b32 s16, s16, 3"); A("s_and_b32 s44, s23, 7"); A("s_add_u32 s16, s16, s44")
    A("s_lshr_b32 s44, s22, 1"); A("s_lshr_b32 s45, s23, 3"); A("s_lshl_b32 s17, s44, 2"); A("s_add_u32 s17, s17, s45")
    if cfg.rot == 8:
        A("s_lshl_b32 s45, s45, 1"); A("s_and_b32 s44, s44, 1"); A("s_add_u32 s18, s16, s45"); A("s_add_u32 s18, s18, s44"); A("s_and_b32 s18, s18, 7")
    elif cfg.rot in (2, 4):
        A("s_add_u32 s18, s16, s17"); A(f"s_lshl_b32 s18, s18, {1 if cfg.rot == 4 else 2}"); A("s_and_b32 s18, s18, 7")
    else:
        A("s_mov_b32 s18, 0")
    A("s_min_u32 s44, s17, 6"); A("s_mul_i32 s20, s17, 5"); A("s_add_u32 s20, s20, s44")
    A("s_cmp_lt_u32 s17, 6"); A("s_cselect_b32 s21, 6, 5")
    A("s_and_b32 s46, s19, 3")
    A("s_and_b32 s44, s46, 1"); A("s_lshr_b32 s45, s46, 1"); A("s_lshl_b32 s45, s45, 5"); A("s_add_u32 s44, s44, s45")
    A("s_lshl_b32 s47, s16, 1"); A("s_add_u32 s47, s47, s44")
    A("v_and_b32 v3, 31, v1"); A("v_lshrrev_b32 v4, 5, v1")
    A("v_lshrrev_b32 v5, 1, v3"); A("v_and_b32 v5, 7, v5"); A("v_xor_b32 v5, v5, v4")
    A("v_lshlrev_b32 v5, 4, v5")
    A("v_lshl_add_u32 v6, v3, 7, v5")
    A("s_mul_i32 s48, s46, 13312")
    A("v_add_u32 v6, s48, v6")
    A("v_lshrrev_b32 v7, 4, v1"); A("v_and_b32 v7, 1, v7")
    A("v_lshrrev_b32 v8, 2, v1"); A("v_and_b32 v8, 3, v8")
    A("v_lshl_add_u32 v9, v8, 1, v7")
    A("v_mul_u32_u24 v10, 26624, v4"); A("v_lshl_add_u32 v10, v7, 10, v10"); A("v_lshl_add_u32 v10, v8, 8, v10")
    A("v_and_b32 v11, 3, v1"); A("v_lshl_add_u32 v10, v11, 3, v10"); A("v_add_u32 v10, 5120, v10")
    A(f"s_mov_b32 s61, {SLOT}")
    A("s_cmp_ge_u32 s19, 4"); A("s_cbranch_scc1 K1_loader")
    L += k1_compute(cfg)
    A("K1_loader:")
    L += k1_loader(cfg)
    A("K1_end:")
    A("s_endpgm")
    return L

def k1_loader(cfg):
    L = []; A = L.append
    XO, DO, WO = 12, 16, 17
    SX, SW = 25, 29
    ACC = 32
    FR = 48
    T = 88
    A("v_lshrrev_b32 v40, 3, v1"); A("v_and_b32 v41, 7, v1")
    for i in range(4):
        A(f"v_add_u32 v42, {8*i}, v40"); A("v_lshrrev_b32 v43, 1, v42"); A("v_and_b32 v43, 7, v43"); A("v_xor_b32 v43, v43, v41")
        A("v_lshlrev_b32 v42, 16, v42"); A("v_lshl_add_u32 v42, v43, 4, v42")
        A("s_lshl_b32 s44, s47, 10"); A(f"s_sub_u32 s44, s44, {1024*i}")
        A(f"v_add_u32 v{XO+i}, s44, v42")
    A("s_lshl_b32 s44, s46, 3"); A("v_add_u32 v42, s44, v40")
    A("v_lshrrev_b32 v43, 1, v42"); A("v_and_b32 v43, 7, v43"); A("v_xor_b32 v43, v43, v41")
    A("v_and_b32 v42, 15, v42"); A("s_lshl_b32 s44, s17, 4"); A("v_add_u32 v42, s44, v42")
    A("s_cmp_lt_u32 s46, 2"); A("s_cselect_b32 s45, 256, 0")
    A("v_mov_b32 v44, s45"); A("v_cmp_eq_u32 vcc, 0, v42"); A("v_cndmask_b32 v42, v42, v44, vcc")
    A("v_lshlrev_b32 v42, 10, v42"); A(f"v_lshl_add_u32 v{DO}, v43, 4, v42")
    A("v_lshrrev_b32 v40, 4, v1"); A("v_and_b32 v41, 15, v1")
    A("s_lshl_b32 s44, s46, 2"); A("v_add_u32 v42, s44, v40"); A("v_mul_u32_u24 v42, 2752, v42")
    A("v_and_b32 v43, 1, v41"); A("v_lshl_add_u32 v42, v43, 4, v42")
    A("v_lshrrev_b32 v41, 1, v41"); A(f"v_mov_b32 v46, {OOB}")
    woff = [[1024, 2048], [3072, 0], [1024, 2048], [3072, 0]]
    for mat in range(2):
        A("v_lshlrev_b32 v43, 1, v40"); A(f"v_or_b32 v43, {mat}, v43"); A("v_xor_b32 v43, v43, v41")
        A("v_cmp_gt_u32 vcc, s21, v43")
        A("v_add_u32 v43, s20, v43"); A("v_lshl_add_u32 v43, v43, 5, v42"); A("v_cndmask_b32 v43, v46, v43, vcc")
        for q in range(4):
            A(f"v_add_u32 v{WO+2*q+mat}, {q*44032 + 4096 - woff[q][mat]}, v43")
    for q in range(4): A(f"v_xor_b32 v{SX+q}, {32*q}, v6")
    for n in range(3):
        A("s_mul_i32 s44, s46, 3"); A(f"s_add_u32 s44, s44, {n}"); A("s_lshr_b32 s45, s44, 1"); A("s_and_b32 s44, s44, 1"); A("s_lshl_b32 s44, s44, 11")
        A("v_xor_b32 v43, s45, v9"); A("v_lshl_add_u32 v43, v43, 5, v10"); A(f"v_add_u32 v{SW+n}, s44, v43")
        A("s_lshl_b32 s45, s45, 7"); A(f"s_add_u32 s{56+n}, s45, {L_CS}")
    for r in range(10): A(f"v_mov_b32 v{ACC+r}, 0")
    A("v_lshlrev_b32 v42, 2, v1"); A("s_lshl_b32 s44, s46, 8"); A(f"s_add_u32 s44, s44, {L_CS}"); A("v_add_u32 v42, s44, v42")
    A(f"ds_write_b32 v42, v{ACC}")
    A("s_waitcnt lgkmcnt(0)")
    srd(A, 24, "s4", "s5", 2097152)
    A("s_cmp_lt_u32 s46, 2"); A("s_cselect_b32 s28, s8, s10"); A("s_cselect_b32 s29, s9, s11"); A("s_mov_b32 s30, 524288"); A("s_mov_b32 s31, 0x20000")
    A("s_sub_u32 s32, s12, 4096"); A("s_subb_u32 s33, s13, 0"); A(f"s_mov_b32 s34, {1409024+4096}"); A("s_mov_b32 s35, 0x20000")
    A("s_sub_u32 s36, s14, 4096"); A("s_subb_u32 s37, s15, 0"); A(f"s_mov_b32 s38, {1409024+4096}"); A("s_mov_b32 s39, 0x20000")
    srd(A, 40, "s6", "s7", WS_SIZE)
    A("s_mov_b32 s49, s48")
    A("s_mov_b32 s52, 0")
    def dma():
        D = []
        D.append(["s_lshl_b32 s50, s18, 7", "s_mul_i32 s51, s18, 176128", "s_cmp_ge_u32 s52, 8", f"s_cselect_b32 s50, {OOB}, s50", f"s_cselect_b32 s51, {OOB}, s51",
                  "s_mov_b32 m0, s49", f"buffer_load_dwordx4 v{XO}, s[24:27], s50 offen lds"])
        for i in range(1, 4): D.append([f"buffer_load_dwordx4 v{XO+i}, s[24:27], s50 offen offset:{1024*i} lds"])
        D.append(["s_add_u32 m0, s49, 4096", f"buffer_load_dwordx4 v{DO}, s[28:31], s50 offen lds"])
        k = 5
        for q in range(4):
            for mat in range(2):
                pre = [f"s_add_u32 m0, s49, {1024*k}"] if woff[q][mat] == 0 else []
                off = f" offset:{woff[q][mat]}" if woff[q][mat] else ""
                D.append(pre + [f"buffer_load_dwordx4 v{WO+2*q+mat}, s[{32+4*mat}:{35+4*mat}], s51 offen{off} lds"])
                k += 1
        D.append(["s_add_u32 s18, s18, 1", "s_and_b32 s18, s18, 7", "s_add_u32 s52, s52, 1",
                  f"s_add_u32 s49, s49, {SLOT}", f"s_cmp_ge_u32 s49, {3*SLOT}", f"s_cselect_b32 s53, {3*SLOT}, 0", "s_sub_u32 s49, s49, s53"])
        return D
    stamp(cfg, A, 2)
    for s in range(2):
        for d in dma(): L += d
    stamp(cfg, A, 3)
    A("s_mov_b32 s54, 0")
    A("s_mov_b32 s55, 8")
    B = []; C = B.append
    C("s_waitcnt vmcnt(13)"); C("s_barrier")
    order = [("x", 0), ("w", 0, 0), ("x", 1), ("w", 1, 0), ("w", 2, 0), ("x", 2), ("w", 0, 1), ("x", 3), ("w", 1, 1), ("w", 2, 1)]
    reads = []; cnt = []
    for k, f in enumerate(order):
        d = FR + 4*k
        if f[0] == "x":
            reads.append(f"ds_read_b128 {vr(d,4)}, v{SX+f[1]}"); cnt.append(1)
        else:
            reads.append(f"ds_read_b64_tr_b16 {vr(d,2)}, v{SW+f[1]} offset:{f[2]*4096}")
            reads.append(f"ds_read_b64_tr_b16 {vr(d+2,2)}, v{SW+f[1]} offset:{f[2]*4096+WREG}"); cnt.append(2)
    B += reads
    C(f"s_add_u32 s54, s54, 1"); C("s_cmp_eq_u32 s54, 3"); C(f"s_cselect_b32 s53, {(-2*SLOT) & 0xffffffff}, s61"); C("s_cselect_b32 s54, 0, s54")
    V = []
    left = sum(cnt)
    for k, f in enumerate(order):
        left -= cnt[k]; d = FR + 4*k
        V.append(f"s_waitcnt lgkmcnt({min(left, 15)})")
        for r in range(4):
            lo, hi = T + 2*(r % 2), T + 2*(r % 2) + 1
            V.append(f"v_lshlrev_b32 v{lo}, 16, v{d+r}"); V.append(f"v_and_b32 v{hi}, 0xffff0000, v{d+r}")
            if f[0] == "x":
                V.append(f"v_add_f32 v{ACC}, v{ACC}, v{lo}"); V.append(f"v_add_f32 v{ACC+1}, v{ACC+1}, v{hi}")
                V.append(f"v_fmac_f32 v{ACC+2}, v{lo}, v{lo}"); V.append(f"v_fmac_f32 v{ACC+3}, v{hi}, v{hi}")
            else:
                a = ACC + 4 + 2*f[1]
                V.append(f"v_add_f32 v{a}, v{a}, v{lo}"); V.append(f"v_add_f32 v{a+1}, v{a+1}, v{hi}")
    for r in range(SX, SX+7): V.append(f"v_add_u32 v{r}, s53, v{r}")
    D = dma()
    tail = D.pop()
    B += interleave(V, D, start=0, every=14)
    B += tail
    C("s_sub_u32 s55, s55, 1"); C("s_cmp_lg_u32 s55, 0"); C("s_cbranch_scc1 K1_lloop")
    B = [l.strip() for l in pad(B)]; check_backedge(B)
    A("K1_lloop:"); L += B
    stamp(cfg, A, 4)
    for a in range(ACC, ACC+10, 2):
        A(f"v_add_f32 v{a}, v{a}, v{a+1}"); A(f"v_mov_b32 v{a+1}, v{a}")
    for a in range(ACC, ACC+10, 2):
        A(f"v_permlane32_swap_b32 v{a}, v{a+1}")
    for a in range(ACC, ACC+10, 2):
        A(f"v_add_f32 v{a}, v{a}, v{a+1}")
    A(f"v_mul_f32 v{ACC}, {f32(1/512)}, v{ACC}")
    A(f"v_mul_f32 v{ACC+1}, v{ACC}, v{ACC}")
    A(f"v_fma_f32 v{ACC+2}, v{ACC+2}, s60, -v{ACC+1}")
    A(f"v_max_f32 v{ACC+2}, 0, v{ACC+2}")
    A(f"v_add_f32 v{ACC+2}, {f32(1e-5)}, v{ACC+2}")
    A(f"v_rsq_f32 v{ACC+3}, v{ACC+2}")
    A("v_cmp_eq_u32 vcc, 0, v4")
    A(f"v_cndmask_b32 v{ACC+1}, v{ACC+3}, v{ACC}, vcc")
    A("v_lshlrev_b32 v42, 2, v3"); A("v_lshl_add_u32 v43, v4, 9, v42"); A("s_lshl_b32 s44, s46, 7"); A(f"s_add_u32 s44, s44, {L_M}"); A("v_add_u32 v43, s44, v43")
    A(f"ds_write_b32 v43, v{ACC+1}")
    A("s_mov_b32 exec_hi, 0")
    for n in range(3):
        A(f"v_add_u32 v43, s{56+n}, v42"); A(f"ds_add_f32 v43, v{ACC+4+2*n}")
    A("s_waitcnt vmcnt(0) lgkmcnt(0)")
    stamp(cfg, A, 5)
    A("s_barrier")
    stamp(cfg, A, 6); rstamp(cfg, A, 15); dump(cfg, A, 0)
    if cfg.stamps: A("s_mov_b32 exec_hi, 0")
    A("s_cmp_lg_u32 s17, 0"); A("s_cbranch_scc1 K1_end")
    A(f"v_mul_f32 v{ACC+3}, v{ACC+3}, v{ACC+3}")
    A("s_lshl_b32 s44, s47, 7"); A(f"s_add_u32 s44, s44, {WS_RS}")
    A(f"buffer_store_dword v{ACC+3}, v42, s[40:43], s44 offen {cfg.st}")
    A("s_endpgm")
    L.insert(0, f"s_mov_b32 s60, {f32(1/512)}")
    return L

def k1_compute(cfg):
    L = []; A = L.append
    AX, AD, AW = 48, 52, 56
    FB = [64, 96]
    ACC = 128
    WR, WI = 32, 40
    if cfg.prio: A("s_setprio 1")
    for q in range(4): A(f"v_xor_b32 v{AX+q}, {32*q}, v6")
    A("v_lshrrev_b32 v12, 3, v3"); A("v_mul_u32_u24 v12, 13312, v12"); A("v_and_b32 v13, 7, v3"); A("v_lshl_add_u32 v12, v13, 7, v12")
    A("v_add_u32 v12, v12, v5"); A("v_add_u32 v12, 4096, v12")
    for q in range(4): A(f"v_xor_b32 v{AD+q}, {32*q}, v12")
    for u in range(6):
        A(f"v_xor_b32 v12, {u}, v9"); A(f"v_lshl_add_u32 v{AW+u}, v12, 5, v10")
    for r in range(112): A(f"v_mov_b32 v{ACC+r}, 0")
    A("v_cvt_f32_u32 v12, v3"); A(f"v_mul_f32 v12, {f32(-1/32)}, v12")
    A("v_lshlrev_b32 v13, 2, v4"); A("v_cvt_f32_u32 v13, v13"); A("v_mul_f32 v13, v12, v13")
    for kap in range(2):
        for n in range(4):
            for b in range(2):
                idx = 2*n + b; j = 16*kap + 8*(idx//4) + idx % 4
                A(f"v_fmamk_f32 v{14+b}, v12, {f32(j)}, v13")
                A(f"v_cos_f32 v{16+b}, v{14+b}"); A(f"v_sin_f32 v{18+b}, v{14+b}")
            A(f"v_cvt_pk_bf16_f32 v{WR+4*kap+n}, v16, v17"); A(f"v_cvt_pk_bf16_f32 v{WI+4*kap+n}, v18, v19")
    A("s_waitcnt lgkmcnt(0)")
    srd(A, 40, "s6", "s7", WS_SIZE)
    def reads(buf, q):
        R = [f"ds_read_b128 {vr(buf,4)}, v{AX+q}"]
        for u in range(6):
            R.append(f"ds_read_b64_tr_b16 {vr(buf+8+4*u,2)}, v{AW+u} offset:{q*2048}")
            R.append(f"ds_read_b64_tr_b16 {vr(buf+10+4*u,2)}, v{AW+u} offset:{q*2048+WREG}")
        R.append(f"ds_read_b128 {vr(buf+4,4)}, v{AD+q}")
        return R
    A("s_mov_b32 s54, 0"); A("s_mov_b32 s55, 8")
    stamp(cfg, A, 2)
    A("s_barrier")
    stamp(cfg, A, 3)
    L += reads(FB[0], 0)
    B = []; C = B.append
    for q in range(4):
        cur, nxt = FB[q % 2], FB[(q+1) % 2]
        C("s_waitcnt lgkmcnt(0)")
        if q == 3:
            C("s_cmp_eq_u32 s55, 1"); C("s_cbranch_scc1 K1_nobar"); C("s_barrier"); C("K1_nobar:")
        M = [f"v_mfma_f32_32x32x16_bf16 {vr(ACC+16*u,16)}, {vr(cur+8+4*u,4)}, {vr(cur,4)}, {vr(ACC+16*u,16)}" for u in range(6)]
        M.append(f"v_mfma_f32_32x32x16_bf16 {vr(ACC+96,16)}, {vr(cur,4)}, {vr(cur+4,4)}, {vr(ACC+96,16)}")
        F = reads(nxt, (q+1) % 4)
        if q == 1:
            F += ["s_add_u32 s54, s54, 1", "s_cmp_eq_u32 s54, 3", f"s_cselect_b32 s53, {(-2*SLOT) & 0xffffffff}, s61", "s_cselect_b32 s54, 0, s54"]
        if q == 2:
            F += [f"v_add_u32 v{r}, s53, v{r}" for r in range(AX, AX+14)]
        if q == 3:
            F += ["s_sub_u32 s55, s55, 1", "s_cmp_lg_u32 s55, 0"]
        B += interleave(M, F, per=4 if q == 2 else 3)
    C("s_cbranch_scc1 K1_cloop")
    B = [l.strip() for l in pad(B)]; check_backedge(B)
    A(".p2align 3"); A("K1_cloop:"); L += B
    stamp(cfg, A, 4)
    A("s_waitcnt lgkmcnt(0)")
    A("s_barrier")
    stamp(cfg, A, 5)
    if cfg.stamps: A("s_waitcnt lgkmcnt(0)")
    RR, ZB, P, Q, CS, T = 240, 8, 96, 112, [64, 80], 16
    A("s_lshl_b32 s44, s46, 7")
    A("v_lshl_add_u32 v12, v3, 2, s44"); A("v_lshl_add_u32 v13, v4, 4, s44"); A("v_lshlrev_b32 v14, 4, v4")
    for jj in range(4): A(f"ds_read_b128 {vr(RR+4*jj,4)}, v13 offset:{L_R - MISC + 32*jj + 0}".replace("v13 offset:", "v60 offset:"))
    A(f"ds_read_b32 v2, v61 offset:{L_M - MISC}")
    def csreads(u): return [f"ds_read_b128 {vr(CS[u % 2]+4*jj,4)}, v62 offset:{L_CS - MISC + 128*u + 32*jj}" for jj in range(4)]
    pos = len(L) - 5
    L[pos:pos] = [f"v_add_u32 v60, {MISC}, v13", f"v_add_u32 v61, {MISC}, v12", f"v_add_u32 v62, {MISC}, v14"]
    L += csreads(0)
    A("s_waitcnt lgkmcnt(5)")
    Z = ACC + 96
    for r in range(16): A(f"v_mul_f32 v{Z+r}, v{Z+r}, v{RR+r}")
    for n in range(8): A(f"v_cvt_pk_bf16_f32 v{ZB+n}, v{Z+2*n}, v{Z+2*n+1}")
    A(f"v_mfma_f32_32x32x16_bf16 {vr(P,16)}, {vr(WR,4)}, {vr(ZB,4)}, 0")
    A(f"v_mfma_f32_32x32x16_bf16 {vr(Q,16)}, {vr(WI,4)}, {vr(ZB,4)}, 0")
    A(f"v_mfma_f32_32x32x16_bf16 {vr(P,16)}, {vr(WR+4,4)}, {vr(ZB+4,4)}, {vr(P,16)}")
    A(f"v_mfma_f32_32x32x16_bf16 {vr(Q,16)}, {vr(WI+4,4)}, {vr(ZB+4,4)}, {vr(Q,16)}")
    A("v_lshlrev_b32 v63, 4, v1")
    A("s_mul_i32 s50, s47, 86"); A("s_add_u32 s50, s50, s20"); A("s_lshl_b32 s50, s50, 10")
    if WS_H: A(f"s_add_u32 s50, s50, {WS_H}")
    def glu(u):
        a = ACC + 16*u; cs = CS[u % 2]; t = T + 4*(u % 4)
        if u < 5: L.extend(csreads(u+1))
        A(f"s_waitcnt lgkmcnt({4 if u < 5 else 0})")
        for r in range(16): A(f"v_fma_f32 v{a+r}, -v2, v{cs+r}, v{a+r}")
        for r in range(8): A(f"v_mul_f32 v{a+r}, v{a+r}, v{a+8+r}")
        for n in range(4): A(f"v_cvt_pk_bf16_f32 v{t+n}, v{a+2*n}, v{a+2*n+1}")
        A(f"buffer_store_dwordx4 {vr(t,4)}, v63, s[40:43], s50 offen {cfg.st}")
        A("s_add_u32 s50, s50, 1024")
    glu(0)
    for n in range(8):
        A(f"v_permlane16_swap_b32 v{P+2*n}, v{P+2*n+1}"); A(f"v_permlane16_swap_b32 v{Q+2*n}, v{Q+2*n+1}")
    A("v_lshlrev_b32 v12, 10, v4"); A("v_lshl_add_u32 v12, v7, 8, v12"); A("v_and_b32 v13, 15, v1"); A("v_lshl_add_u32 v12, v13, 4, v12")
    A("s_lshl_b32 s44, s46, 2"); A("v_add_u32 v12, s44, v12")
    for n in range(8):
        A(f"v_sub_f32 v{P+2*n}, v{P+2*n}, v{Q+2*n+1}"); A(f"v_add_f32 v{P+2*n+1}, v{P+2*n+1}, v{Q+2*n}")
        A(f"v_cvt_pk_bf16_f32 v{Q+2*n}, v{P+2*n}, v{P+2*n+1}")
        A(f"ds_write_b32 v12, v{Q+2*n} offset:{(8*(n//2) + 2*(n % 2))*256}")
    A("s_waitcnt lgkmcnt(0)")
    A("s_barrier")
    A("s_lshl_b32 s44, s46, 11"); A("v_add_u32 v12, s44, v63")
    A(f"ds_read_b128 {vr(P,4)}, v12"); A(f"ds_read_b128 {vr(P+4,4)}, v12 offset:1024")
    A("v_lshrrev_b32 v12, 4, v1"); A("v_lshlrev_b32 v12, 16, v12"); A("v_lshl_add_u32 v12, v13, 4, v12")
    A("s_lshl_b32 s44, s46, 19"); A("s_lshl_b32 s45, s16, 12"); A("s_add_u32 s44, s44, s45"); A("s_lshl_b32 s45, s17, 8"); A("s_add_u32 s44, s44, s45")
    A(f"s_add_u32 s44, s44, {WS_AP}"); A("s_add_u32 s45, s44, 0x40000")
    A("s_waitcnt lgkmcnt(0)")
    A(f"buffer_store_dwordx4 {vr(P,4)}, v12, s[40:43], s44 offen {cfg.st}")
    A(f"buffer_store_dwordx4 {vr(P+4,4)}, v12, s[40:43], s45 offen {cfg.st}")
    for u in range(1, 5): glu(u)
    A("s_cmp_eq_u32 s21, 5"); A("s_cbranch_scc1 K1_cend")
    glu(5)
    A("K1_cend:")
    stamp(cfg, A, 6)
    if cfg.stamps: A("s_waitcnt vmcnt(0)")
    stamp(cfg, A, 7); rstamp(cfg, A, 15); dump(cfg, A, 0)
    A("s_endpgm")
    return L

K2_RING, K2_X, K2_EX = 0, 65536, 73728
K2_LDS = K2_EX + 16384

def k2(cfg):
    L = []; A = L.append
    ACC0, ACC1, Y = 16, 32, 48
    HR, AP, MF, WF = 64, 128, 160, [192, 200]
    XF, T = 208, 224
    A("s_cmp_ge_u32 s2, 256"); A("s_cbranch_scc1 K2_end")
    rstamp(cfg, A, 0); stamp(cfg, A, 1)
    A("s_load_dwordx2 s[4:5], s[0:1], 0")
    A("s_load_dwordx4 s[8:11], s[0:1], 64")
    A("s_load_dwordx2 s[6:7], s[0:1], 88")
    A("v_lshrrev_b32 v2, 6, v0"); A("v_and_b32 v1, 63, v0")
    A("s_and_b32 s22, s2, 7"); A("s_lshr_b32 s23, s2, 3")
    A("v_readfirstlane_b32 s19, v2")
    A("s_and_b32 s17, s23, 7"); A("s_lshr_b32 s23, s23, 3")
    A("s_lshl_b32 s22, s22, 1"); A("s_lshr_b32 s44, s23, 1"); A("s_add_u32 s22, s22, s44")
    A("s_sub_u32 s44, 32, s22"); A("s_cmp_eq_u32 s22, 0"); A("s_cselect_b32 s44, 16, s44")
    A("s_and_b32 s23, s23, 1"); A("s_cmp_eq_u32 s23, 0"); A("s_cselect_b32 s16, s22, s44")
    A("s_lshr_b32 s20, s19, 1"); A("s_and_b32 s21, s19, 1")
    A("s_lshl_b32 s47, s21, 5"); A("s_add_u32 s47, s47, s16")
    A("v_and_b32 v3, 31, v1"); A("v_lshrrev_b32 v4, 5, v1")
    A("s_lshl_b32 s44, s17, 6"); A("s_lshl_b32 s45, s20, 5"); A("s_add_u32 s46, s44, s45")
    A("v_add_u32 v5, s46, v3")
    A("v_sub_u32 v6, 512, v5"); A("v_and_b32 v6, 255, v6")
    A("s_sub_u32 s44, 32, s16"); A("s_and_b32 s44, s44, 31"); A(f"s_mov_b32 s49, {f32(-1/2048)}")
    A("s_cmp_lt_u32 s17, 4"); A("s_cselect_b32 s48, s16, s44"); A("s_cselect_b64 vcc, -1, 0"); A(f"s_cselect_b32 s49, {f32(1/2048)}, s49")
    A("v_cndmask_b32 v6, v6, v5, vcc")
    A("v_lshlrev_b32 v6, 4, v6"); A("v_lshl_add_u32 v6, v4, 12, v6")
    A("v_cmp_eq_u32 vcc, 0, v5"); A(f"v_mov_b32 v7, {OOB}"); A("v_cndmask_b32 v6, v6, v7, vcc")
    A("s_lshl_b32 s48, s48, 16"); A(f"s_add_u32 s48, s48, {WS_AP}")
    A("v_lshrrev_b32 v7, 2, v1"); A("v_lshrrev_b32 v8, 2, v7"); A("v_and_b32 v9, 3, v1"); A("v_xor_b32 v8, v8, v9"); A("v_and_b32 v8, 3, v8")
    A("v_lshlrev_b32 v7, 16, v7"); A("v_lshl_add_u32 v7, v8, 4, v7")
    A("s_lshl_b32 s44, s47, 10"); A("s_lshl_b32 s45, s46, 1"); A("s_add_u32 s44, s44, s45"); A("v_add_u32 v7, s44, v7")
    A("v_add_u32 v8, 0x100000, v7")
    A("v_lshrrev_b32 v9, 3, v1"); A("v_and_b32 v10, 7, v1"); A("v_lshlrev_b32 v11, 1, v9"); A("v_and_b32 v11, 4, v11"); A("v_xor_b32 v10, v10, v11")
    A("v_lshlrev_b32 v9, 10, v9"); A("v_lshl_add_u32 v9, v10, 4, v9")
    A("s_lshl_b32 s44, s21, 13"); A("s_lshl_b32 s45, s17, 7"); A("s_add_u32 s44, s44, s45"); A("v_add_u32 v9, s44, v9")
    A("v_lshlrev_b32 v10, 4, v1")
    A("s_mul_i32 s50, s20, 704512")
    A("s_mul_i32 s51, s47, 86"); A("s_mul_i32 s44, s20, 43"); A("s_add_u32 s51, s51, s44"); A("s_lshl_b32 s51, s51, 10")
    if WS_H: A(f"s_add_u32 s51, s51, {WS_H}")
    A("s_lshl_b32 s52, s20, 15"); A("s_lshl_b32 s44, s21, 10"); A("s_add_u32 s53, s52, s44")
    A("v_lshlrev_b32 v11, 2, v3"); A("s_lshl_b32 s54, s47, 7"); A(f"s_add_u32 s54, s54, {WS_RS}")
    A("s_lshl_b32 s55, s19, 11"); A(f"s_add_u32 s55, s55, {K2_X}")
    A("s_waitcnt lgkmcnt(0)")
    srd(A, 24, "s4", "s5", 2097152); srd(A, 28, "s8", "s9", 1409024); srd(A, 32, "s10", "s11", 2097152); srd(A, 40, "s6", "s7", WS_SIZE)
    loads = []
    for k in range(8):
        loads.append([f"buffer_load_dwordx4 {vr(AP+4*k,4)}, v6, s[40:43], s48 offen", "s_add_u32 s48, s48, 8192"])
    loads.append(["s_mov_b32 m0, s55", "buffer_load_dwordx4 v7, s[24:27], 0 offen lds"])
    loads.append(["s_add_u32 m0, s55, 1024", "buffer_load_dwordx4 v8, s[24:27], 0 offen lds"])
    loads.append(["buffer_load_dword v2, v11, s[40:43], s54 offen"])
    def step_loads(st):
        return [[f"s_add_u32 m0, s53, {(st % 16)*2048}", "buffer_load_dwordx4 v9, s[28:31], s50 offen lds", "s_add_u32 s50, s50, 16384"],
                [f"buffer_load_dwordx4 {vr(HR+4*(st % 16),4)}, v10, s[40:43], s51 offen", "s_add_u32 s51, s51, 1024"]]
    AHEAD = 12
    for st in range(AHEAD): loads += step_loads(st)
    G = []; g = G.append
    g("v_lshrrev_b32 v12, 2, v1"); g("v_and_b32 v12, 3, v12")
    g("v_lshl_add_u32 v13, v4, 2, v12"); g("v_lshlrev_b32 v13, 7, v13")
    g("v_lshrrev_b32 v14, 4, v1"); g("v_and_b32 v14, 1, v14"); g("v_lshl_add_u32 v13, v14, 5, v13")
    g("v_and_b32 v14, 3, v1"); g("v_lshl_add_u32 v13, v14, 3, v13"); g("v_add_u32 v13, s52, v13")
    g("v_lshrrev_b32 v12, 1, v12"); g("v_xor_b32 v12, s20, v12")
    g("v_lshl_add_u32 v14, v12, 6, v13")
    g("v_xor_b32 v15, 64, v14")
    for r in range(32): g(f"v_mov_b32 v{ACC0+r}, 0")
    g(f"v_lshl_add_u32 v{T}, v3, 6, s47"); g(f"v_cvt_f32_u32 v{T}, v{T}"); g(f"v_mul_f32 v{T}, s49, v{T}")
    g(f"v_lshlrev_b32 v{T+1}, 1, v4"); g(f"v_cvt_f32_u32 v{T+1}, v{T+1}"); g(f"v_mul_f32 v{T+1}, v{T}, v{T+1}")
    for k in range(8):
        for w4 in range(4):
            c = 4*k + [0, 1, 32, 33][w4]; a = T + 2 + 3*(w4 % 2)
            g(f"v_fmamk_f32 v{a}, v{T}, {f32(c)}, v{T+1}")
            g(f"v_cos_f32 v{a+1}, v{a}"); g(f"v_sin_f32 v{a+2}, v{a}")
            if w4 % 2 == 1:
                g(f"v_cvt_pk_bf16_f32 v{MF+4*k+w4-1}, v{T+3}, v{T+4}")
                g(f"v_cvt_pk_bf16_f32 v{MF+4*k+w4}, v{T+6}, v{T+7}")
    stamp(cfg, A, 2)
    for d in loads[:10]: L += d
    L += interleave(G, loads[10:], start=8, every=7)
    stamp(cfg, A, 3)
    younger = len(loads) - 8
    A(f"s_waitcnt vmcnt({younger})")
    for k in range(8):
        A(f"v_mfma_f32_32x32x16_bf16 {vr(Y,16)}, {vr(AP+4*k,4)}, {vr(MF+4*k,4)}, {vr(Y,16) if k else 0}")
    A(f"s_waitcnt vmcnt({2*AHEAD})")
    A("v_lshrrev_b32 v12, 2, v3"); A("v_and_b32 v12, 3, v12"); A("v_lshlrev_b32 v12, 4, v12")
    A("v_lshl_add_u32 v12, v3, 6, v12"); A("v_lshl_add_u32 v12, v4, 3, v12"); A("v_add_u32 v12, s55, v12")
    for jj in range(4):
        A(f"v_xor_b32 v{T+8+jj}, {16*jj}, v12"); A(f"ds_read_b64 {vr(T+2*jj,2)}, v{T+8+jj}")
    A("s_waitcnt lgkmcnt(0)")
    for n in range(8):
        A(f"v_lshlrev_b32 v{XF+2*n}, 16, v{T+n}"); A(f"v_and_b32 v{XF+2*n+1}, 0xffff0000, v{T+n}")
    for r in range(16): A(f"v_mul_f32 v{Y+r}, v{Y+r}, v2")
    A(f"v_mul_f32 v2, {f32(-1.4426950408889634)}, v2")
    def wreads(st):
        b = WF[st % 2]; o = (st % 16)*2048
        return [f"ds_read_b64_tr_b16 {vr(b,2)}, v14 offset:{o}", f"ds_read_b64_tr_b16 {vr(b+2,2)}, v14 offset:{o+1024}",
                f"ds_read_b64_tr_b16 {vr(b+4,2)}, v15 offset:{o}", f"ds_read_b64_tr_b16 {vr(b+6,2)}, v15 offset:{o+1024}"]
    stamp(cfg, A, 4)
    if cfg.stamps: A("s_waitcnt lgkmcnt(0)")
    NST = 43
    for c0 in range(0, NST, 4):
        steps = list(range(c0, min(c0+4, NST)))
        issued = min(NST, c0 + AHEAD)
        A(f"s_waitcnt vmcnt({2*(issued - steps[-1] - 1)})")
        A("s_barrier")
        L += wreads(c0)
        for st in steps:
            if st + AHEAD < NST:
                for d in step_loads(st + AHEAD): L += d
            if st != steps[-1]:
                L += wreads(st+1); A("s_waitcnt lgkmcnt(4)")
            else:
                A("s_waitcnt lgkmcnt(0)")
            b = WF[st % 2]; h = HR + 4*(st % 16)
            A(f"v_mfma_f32_32x32x16_bf16 {vr(ACC1,16)}, {vr(b+4,4)}, {vr(h,4)}, {vr(ACC1,16)}")
            A(f"v_mfma_f32_32x32x16_bf16 {vr(ACC0,16)}, {vr(b,4)}, {vr(h,4)}, {vr(ACC0,16)}")
    stamp(cfg, A, 5)
    A("s_lshl_b32 s44, s19, 12"); A("s_xor_b32 s45, s44, 8192"); A(f"s_add_u32 s44, s44, {K2_EX}"); A(f"s_add_u32 s45, s45, {K2_EX}")
    A("v_add_u32 v13, s44, v10"); A("v_add_u32 v14, s45, v10")
    for q in range(4): A(f"ds_write_b128 v13, {vr(ACC1+4*q,4)} offset:{1024*q}")
    A("s_waitcnt lgkmcnt(0)"); A("s_barrier")
    for q in range(4): A(f"ds_read_b128 {vr(ACC1+4*q,4)}, v14 offset:{1024*q}")
    E = HR
    for q in range(4):
        A(f"s_waitcnt lgkmcnt({3-q})")
        for r in range(4*q, 4*q+4): A(f"v_add_f32 v{ACC0+r}, v{ACC0+r}, v{ACC1+r}")
        for r in range(4*q, 4*q+4): A(f"v_mul_f32 v{E+r}, v{ACC0+r}, v2")
        for r in range(4*q, 4*q+4): A(f"v_exp_f32 v{E+r}, v{E+r}")
        for r in range(4*q, 4*q+4): A(f"v_mul_f32 v{ACC0+r}, v{ACC0+r}, v{Y+r}")
        for r in range(4*q, 4*q+4): A(f"v_add_f32 v{E+r}, 1.0, v{E+r}")
        for r in range(4*q, 4*q+4): A(f"v_rcp_f32 v{E+r}, v{E+r}")
        for r in range(4*q, 4*q+4): A(f"v_fma_f32 v{ACC0+r}, v{ACC0+r}, v{E+r}, v{XF+r}")
        A(f"v_cvt_pk_bf16_f32 v{T+2*q}, v{ACC0+4*q}, v{ACC0+4*q+1}"); A(f"v_cvt_pk_bf16_f32 v{T+2*q+1}, v{ACC0+4*q+2}, v{ACC0+4*q+3}")
        A(f"ds_write_b64 v{T+8+q}, {vr(T+2*q,2)}")
    A("v_add_u32 v13, s55, v10")
    A("s_waitcnt lgkmcnt(0)")
    A(f"ds_read_b128 {vr(E,4)}, v13"); A(f"ds_read_b128 {vr(E+4,4)}, v13 offset:1024")
    A("s_waitcnt lgkmcnt(1)")
    A(f"buffer_store_dwordx4 {vr(E,4)}, v7, s[32:35], 0 offen")
    A("s_waitcnt lgkmcnt(0)")
    A(f"buffer_store_dwordx4 {vr(E+4,4)}, v8, s[32:35], 0 offen")
    stamp(cfg, A, 6)
    if cfg.stamps: A("s_waitcnt vmcnt(0)")
    stamp(cfg, A, 7); rstamp(cfg, A, 15); dump(cfg, A, 1)
    A("K2_end:")
    A("s_endpgm")
    return L

def kernel(name, body):
    return [f".globl {name}", ".p2align 8", f".type {name},@function", f"{name}:"] + pad(body)

def desc(name, nv):
    return f""".amdhsa_kernel {name}
  .amdhsa_next_free_vgpr {nv}
  .amdhsa_next_free_sgpr 102
  .amdhsa_accum_offset {nv}
  .amdhsa_group_segment_fixed_size 0
  .amdhsa_kernarg_size 96
  .amdhsa_user_sgpr_count 2
  .amdhsa_user_sgpr_kernarg_segment_ptr 1
  .amdhsa_system_sgpr_workgroup_id_x 1
.end_amdhsa_kernel
"""

def build(cfg, extra_launch="", extra_code=None, extra_desc=""):
    ref = open(f"cdna_kernels/{NAME}.s.ref").read().split("\n")
    head = [l for l in ref if l.startswith(";   offset") or l.startswith("; Kernarg")]
    out = head + ([extra_launch] if extra_launch else []) + [f"; @launch kernel=fnet_k1_kernel grid=(256,1,1) block=(512,1,1) lds={K1_LDS}",
                  f"; @launch kernel=fnet_k2_kernel grid=(256,1,1) block=(256,1,1) lds={K2_LDS}",
                  '.amdgcn_target "amdgcn-amd-amdhsa--gfx950"', ".text"]
    out += kernel("fnet_k1_kernel", k1(cfg)) + kernel("fnet_k2_kernel", k2(cfg)) + (extra_code or [])
    out += ['.section .rodata,"a"', ".p2align 6", desc("fnet_k1_kernel", 256), ".p2align 6", desc("fnet_k2_kernel", 256), extra_desc]
    return "\n".join(out) + "\n"

if __name__ == "__main__":
    cfg = Cfg()
    for a in sys.argv[2:]:
        k, v = a.split("="); setattr(cfg, k, type(getattr(cfg, k))(v) if not isinstance(getattr(cfg, k), bool) else v == "1")
    open(sys.argv[1], "w").write(build(cfg))
```

```python
import struct, sys
from asmdsl import pad, check_backedge, interleave

NAME = "recurrent_scan__spectral_fnet__glu_gated_bilinear__prompt"
WS_H, WS_AP, WS_XN = 0, 0x600000, 0x800000
WS_FF, WS_FS, WS_F3, WS_E, WS_ST, WS_SIZE = 0xA00000, 0xA10000, 0xA20000, 0xA30000, 0xB00000, 0x1000000
OOB = 0x40000000
SLOT, WREG, KH = 53248, 13312, 26624
LDS = 163840
MISC = 3*SLOT
NFAST, NSAFE = 3000, 400000

def f32(x): return "0x%08x" % struct.unpack("<I", struct.pack("<f", x))[0]
def vr(a, n): return f"v[{a}:{a+n-1}]" if n > 1 else f"v{a}"

class Cfg:
    rot = "g"
    prio = 1
    stamps = False
    s3step = 26
    ahead = 12
    codepf = 1
    w1 = 'early'
    ldelay = 0
    wwarm = 1
    hpre = 4
    wb = 1
    tlb = 1
    c3 = 1
    xnst = 'sc1'
    hst = 'sc1'
    wpf = 0
    dgen = 1
    skew = 1

def srd(A, reg, lo, hi, size):
    A(f"s_mov_b32 s{reg}, {lo}"); A(f"s_mov_b32 s{reg+1}, {hi}"); A(f"s_mov_b32 s{reg+2}, {size}"); A(f"s_mov_b32 s{reg+3}, 0x20000")

def stamp(cfg, A, i):
    if cfg.stamps: A(f"s_memtime s[{64+2*i}:{65+2*i}]")
def rstamp(cfg, A, i):
    if cfg.stamps: A(f"s_memrealtime s[{64+2*i}:{65+2*i}]")
def dump(cfg, A):
    if not cfg.stamps: return
    A("s_waitcnt lgkmcnt(0)"); A("s_mov_b64 exec, -1")
    for i in range(16): A(f"v_mov_b32 v{16+i}, s{64+2*i}")
    A("s_lshl_b32 s44, s2, 3"); A("s_add_u32 s44, s44, s19"); A("s_lshl_b32 s44, s44, 6"); A(f"s_add_u32 s44, s44, {WS_ST}")
    A("v_mov_b32 v12, 0")
    for q in range(4): A(f"buffer_store_dwordx4 v[{16+4*q}:{19+4*q}], v12, s[40:43], s44 offen offset:{16*q}")

def poll(A, name, vaddr, soff_fast, soff_safe, tmp, x4=False, on_timeout=None, safe_tag='s62'):
    def check(tag):
        if x4:
            A(f"v_xor_b32 v{tmp}, s62, v{tmp}")
            for r in range(1, 4):
                A(f"v_xor_b32 v{tmp+r}, s62, v{tmp+r}"); A(f"v_or_b32 v{tmp}, v{tmp}, v{tmp+r}")
            A(f"v_cmp_ne_u32 vcc, 0, v{tmp}")
        else:
            A(f"v_cmp_ne_u32 vcc, {tag}, v{tmp}")
    ld = f"buffer_load_dwordx4 {vr(tmp,4)}" if x4 else f"buffer_load_dword v{tmp}"
    phases = ([("f", soff_fast, NFAST)] if soff_fast else []) + [("s", soff_safe, NSAFE)]
    for tagc, soff, bound in phases:
        if tagc == "s" and on_timeout: on_timeout()
        A("s_mov_b32 s63, 0")
        A(f"{name}_{tagc}:")
        A(f"{ld}, v{vaddr}, s[40:43], {soff} offen sc1"); A("s_add_u32 s63, s63, 1"); A("s_waitcnt vmcnt(0)")
        check('s100' if tagc == 'f' else safe_tag)
        A(f"s_cbranch_vccz {name}_ok")
        if tagc == "s": A("s_sleep 4")
        A(f"s_cmp_lt_u32 s63, {bound}"); A(f"s_cbranch_scc1 {name}_{tagc}")
    A(f"{name}_ok:")

def prologue(cfg):
    L = []; A = L.append
    A("s_cmp_ge_u32 s2, 256"); A("s_cbranch_scc1 K_end")
    rstamp(cfg, A, 0); stamp(cfg, A, 1)
    A("s_load_dwordx2 s[4:5], s[0:1], 0")
    A("s_load_dwordx2 s[6:7], s[0:1], 88")
    A("s_load_dwordx4 s[12:15], s[0:1], 48")
    A("s_load_dwordx4 s[8:11], s[0:1], 24")
    A("s_load_dwordx4 s[56:59], s[0:1], 64")
    A("v_lshrrev_b32 v2, 6, v0"); A("v_and_b32 v1, 63, v0")
    A("s_and_b32 s18, s2, 7"); A("s_lshr_b32 s17, s2, 3")
    A("v_readfirstlane_b32 s19, v2")
    A("s_lshr_b32 s44, s17, 4"); A("s_and_b32 s17, s17, 15"); A("s_lshl_b32 s16, s18, 1"); A("s_add_u32 s16, s16, s44")
    if cfg.rot == "g4":
        A("s_lshl_b32 s44, s44, 2"); A("s_add_u32 s18, s18, s44"); A("s_and_b32 s18, s18, 7")
    elif cfg.rot == "0":
        A("s_mov_b32 s18, 0")
    elif cfg.rot == "g2":
        A("s_and_b32 s18, s18, 6")
    A("s_and_b32 s46, s19, 3")
    A("v_lshlrev_b32 v63, 4, v1")
    A("s_cmp_lt_u32 s19, 4"); A("s_cbranch_scc1 K_compute")
    return L

def tile_c(A, dst, tile):
    A(f"s_and_b32 s44, {tile}, 1"); A(f"s_lshr_b32 s45, {tile}, 1"); A("s_lshl_b32 s45, s45, 5"); A("s_add_u32 s44, s44, s45")
    A(f"s_lshl_b32 {dst}, s16, 1"); A(f"s_add_u32 {dst}, {dst}, s44")

WOFF = [[1024, 2048], [3072, 0], [1024, 2048], [3072, 0]]
def x_step(cfg, XO, XL):
    if not cfg.skew: return ["s_lshl_b32 s50, s18, 7", "s_add_u32 s50, s50, s55"]
    return ["s_lshl_b32 s50, s18, 7", f"v_add_u32 v{XL+1}, s50, v{XL}", f"v_and_b32 v{XL+1}, 0x380, v{XL+1}", "s_mov_b32 s50, s55"] + \
           [f"v_add_u32 v{XL+2+i}, v{XL+1}, v{XO+i}" for i in range(4)]
def x_offsets(A, XO, XL):
    A("v_lshrrev_b32 v40, 3, v1"); A("v_and_b32 v41, 7, v1"); A("v_lshrrev_b32 v43, 1, v40"); A(f"v_lshlrev_b32 v{XL}, 7, v40")
    A("s_lshl_b32 s44, s46, 15")
    for i in range(4):
        A(f"v_xor_b32 v42, {(4*i) & 7}, v43"); A("v_xor_b32 v42, v42, v41"); A("v_lshlrev_b32 v42, 4, v42")
        A("v_lshl_add_u32 v42, v40, 10, v42"); A(f"s_add_u32 s45, s44, {8192*i - 1024*i}"); A(f"v_add_u32 v{XO+i}, s45, v42")
def x_dma(cfg, XO, XL):
    if cfg.skew: XO = XL + 2
    return [[f"buffer_load_dwordx4 v{XO+i}, s[40:43], s50 offen" + (f" offset:{1024*i}" if i else "") + " lds"] for i in range(4)]

def loader(cfg):
    L = []; A = L.append
    XO, DO, WO, VD, T = 12, 16, 17, 25, 28
    A("s_min_u32 s44, s17, 6"); A("s_mul_i32 s20, s17, 5"); A("s_add_u32 s20, s20, s44")
    A("s_cmp_lt_u32 s17, 6"); A("s_cselect_b32 s21, 6, 5")
    A("v_lshrrev_b32 v40, 4, v1"); A("v_and_b32 v41, 15, v1")
    A("s_lshl_b32 s44, s46, 2"); A("v_add_u32 v42, s44, v40"); A("v_mul_u32_u24 v42, 2752, v42")
    A("v_and_b32 v43, 1, v41"); A("v_lshl_add_u32 v42, v43, 4, v42")
    A("v_lshrrev_b32 v41, 1, v41"); A(f"v_mov_b32 v46, {OOB}"); A("v_lshlrev_b32 v44, 1, v40"); A("v_xor_b32 v44, v44, v41")
    for mat in range(2):
        if mat: A("v_xor_b32 v44, 1, v44")
        A("v_cmp_gt_u32 vcc, s21, v44")
        A("v_add_u32 v43, s20, v44"); A("v_lshl_add_u32 v43, v43, 5, v42"); A("v_cndmask_b32 v43, v46, v43, vcc")
        for q in range(4):
            A(f"v_add_u32 v{WO+2*q+mat}, {q*44032 + 4096 - WOFF[q][mat]}, v43")
    if not cfg.dgen:
        A("v_lshrrev_b32 v40, 3, v1"); A("v_and_b32 v41, 7, v1")
        A("s_lshl_b32 s44, s46, 3"); A("v_add_u32 v42, s44, v40")
        A("v_lshrrev_b32 v43, 1, v42"); A("v_and_b32 v43, 7, v43"); A("v_xor_b32 v43, v43, v41")
        A("v_and_b32 v42, 15, v42"); A("s_lshl_b32 s44, s17, 4"); A("v_add_u32 v42, s44, v42")
        A("s_cmp_lt_u32 s46, 2"); A("s_cselect_b32 s45, 256, 0")
        A("v_mov_b32 v44, s45"); A("v_cmp_eq_u32 vcc, 0, v42"); A("v_cndmask_b32 v42, v42, v44, vcc")
        A("v_lshlrev_b32 v42, 10, v42"); A(f"v_lshl_add_u32 v{DO}, v43, 4, v42")
    A("s_mul_i32 s49, s46, 13312")
    A("s_waitcnt lgkmcnt(0)")
    A("s_sub_u32 s32, s12, 4096"); A("s_subb_u32 s33, s13, 0"); A(f"s_mov_b32 s34, {1409024+4096}"); A("s_mov_b32 s35, 0x20000")
    A("s_sub_u32 s36, s14, 4096"); A("s_subb_u32 s37, s15, 0"); A(f"s_mov_b32 s38, {1409024+4096}"); A("s_mov_b32 s39, 0x20000")
    if not cfg.dgen: A("s_cmp_lt_u32 s46, 2"); A("s_cselect_b32 s28, s8, s10"); A("s_cselect_b32 s29, s9, s11"); A("s_mov_b32 s30, 524288"); A("s_mov_b32 s31, 0x20000")
    def head(): return ["s_lshl_b32 s52, s18, 7", "s_mul_i32 s51, s18, 176128"]
    def wd_dma():
        D = [["s_add_u32 m0, s49, 4096"] + ([] if cfg.dgen else [f"buffer_load_dwordx4 v{DO}, s[28:31], s52 offen lds"])]
        k = 5
        for q in range(4):
            for mat in range(2):
                pre = [f"s_add_u32 m0, s49, {1024*k}"] if WOFF[q][mat] == 0 else []
                off = f" offset:{WOFF[q][mat]}" if WOFF[q][mat] else ""
                D.append(pre + [f"buffer_load_dwordx4 v{WO+2*q+mat}, s[{32+4*mat}:{35+4*mat}], s51 offen{off} lds"]); k += 1
        return D
    def dgen():
        if not cfg.dgen: return []
        G = ["s_lshl_b32 s44, s18, 6", "v_add_u32 v58, s44, v56", "v_cvt_f32_u32 v58, v58", "v_fma_f32 v58, v54, v58, v55"]
        for i in range(8): G += [f"v_fmamk_f32 v{64+i}, v54, {f32(i)}, v58"]
        for i in range(8): G += [f"v_cos_f32 v{64+i}, v{64+i}"]
        for n in range(4): G += [f"v_cvt_pk_bf16_f32 v{72+n}, v{64+2*n}, v{65+2*n}"]
        G += ["s_add_u32 s44, s49, 4096", "v_add_u32 v58, s44, v63", "ds_write_b128 v58, v[72:75]"]
        return G
    NS = 12 if cfg.dgen else 13
    def tail(): return ["s_add_u32 s18, s18, 1", "s_and_b32 s18, s18, 7", f"s_add_u32 s49, s49, {SLOT}", f"s_cmp_ge_u32 s49, {3*SLOT}",
                        f"s_cselect_b32 s53, {3*SLOT}, 0", "s_sub_u32 s49, s49, s53"]
    for i in range(cfg.ldelay): A("s_nop 15"); A("s_nop 15")
    stamp(cfg, A, 2)
    L += head()
    for d in wd_dma(): L += d
    if cfg.dgen:
        A("v_and_b32 v54, 15, v1"); A("s_lshl_b32 s44, s17, 4"); A("v_add_u32 v54, s44, v54")
        A("v_and_b32 v55, 16, v1"); A("v_or_b32 v56, v54, v55"); A("v_cmp_eq_u32 vcc, 0, v56"); A("v_mov_b32 v56, 256"); A("v_cndmask_b32 v54, v54, v56, vcc")
        A("v_cvt_f32_u32 v54, v54"); A(f"v_mul_f32 v54, {f32(1/512)}, v54"); A("v_cvt_f32_u32 v55, v55"); A(f"v_mul_f32 v55, {f32(1/64)}, v55")
        A("v_lshrrev_b32 v56, 5, v1"); A("v_lshlrev_b32 v56, 3, v56"); A("s_lshl_b32 s44, s46, 4"); A("v_add_u32 v56, s44, v56")
    L += dgen()
    L += tail()
    srd(A, 40, "s6", "s7", WS_SIZE)
    A(f"s_add_u32 s24, s6, {WS_E}"); A("s_addc_u32 s25, s7, 0"); A("s_load_dword s62, s[24:25], 0")
    A("v_and_b32 v42, 3, v1"); A("v_lshlrev_b32 v42, 7, v42"); A("s_lshl_b32 s54, s16, 12"); A(f"s_add_u32 s54, s54, {WS_FF}")
    A(f"buffer_load_dword v{T}, v42, s[40:43], s54 offen sc1")
    if cfg.codepf:
        A("s_getpc_b64 s[24:25]"); A("K_pc:"); A("s_sub_u32 s24, s24, K_pc-K_start"); A("s_subb_u32 s25, s25, 0")
        A("s_mov_b32 s26, K_stop-K_start"); A("s_mov_b32 s27, 0x20000")
        A("s_and_b32 s44, s17, 3"); A("s_lshl_b32 s44, s44, 2"); A("s_add_u32 s44, s44, s46"); A("s_lshl_b32 s44, s44, 10")
        A("v_and_b32 v42, 7, v1"); A("v_lshlrev_b32 v42, 7, v42")
        A(f"buffer_load_dword v{T+1}, v42, s[24:27], s44 offen")
    srd(A, 96, "s56", "s57", 1409024)
    if cfg.tlb:
        A("s_lshl_b32 s44, s46, 19"); A("s_lshl_b32 s45, s16, 12"); A("s_add_u32 s44, s44, s45"); A("s_lshl_b32 s45, s17, 8"); A("s_add_u32 s44, s44, s45")
        A(f"v_mov_b32 v42, {WS_AP}"); A(f"buffer_load_dword v{T+3}, v42, s[40:43], s44 offen sc1")
    if cfg.wwarm == 1:
        A("s_lshl_b32 s44, s2, 2"); A("s_add_u32 s44, s44, s46"); A("s_mul_i32 s44, s44, 1376"); A("s_and_b32 s44, s44, 0xffffff80")
        A("v_min_u32 v42, 11, v1"); A("v_lshlrev_b32 v42, 7, v42")
        A(f"buffer_load_dword v{T+2}, v42, s[96:99], s44 offen")
    if cfg.w1 == "late": A(f"s_waitcnt vmcnt({1 + cfg.codepf + (cfg.wwarm == 1) + cfg.tlb})")
    L += head()
    for d in wd_dma(): L += d
    L += dgen()
    L += tail()
    if cfg.wpf:
        A("s_lshl_b32 s44, s2, 2"); A("s_add_u32 s44, s44, s46"); A("s_mul_i32 s44, s44, 1032"); A("s_and_b32 s44, s44, 0xffffff80"); A(f"s_add_u32 s44, s44, {128*2752 + 4096}")
        A("v_min_u32 v42, 8, v1"); A("v_lshlrev_b32 v42, 7, v42")
        A(f"buffer_load_dword v{T+5}, v42, s[32:35], s44 offen"); A(f"buffer_load_dword v{T+6}, v42, s[36:39], s44 offen")
    if cfg.wwarm == 2:
        A("s_lshl_b32 s44, s2, 2"); A("s_add_u32 s44, s44, s46"); A("s_mul_i32 s44, s44, 1376"); A("s_and_b32 s44, s44, 0xffffff80")
        A("v_min_u32 v42, 11, v1"); A("v_lshlrev_b32 v42, 7, v42")
        A(f"buffer_load_dword v{T+2}, v42, s[96:99], s44 offen")
    stamp(cfg, A, 3)
    XL = 48
    x_offsets(A, XO, XL)
    A("s_lshl_b32 s55, s16, 17"); A(f"s_add_u32 s55, s55, {WS_XN}")
    A("s_and_b32 s22, s17, 7")
    A("v_lshlrev_b32 v43, 1, v40"); A("v_and_b32 v43, 4, v43"); A("v_xor_b32 v43, v43, v41"); A("v_lshlrev_b32 v43, 4, v43"); A("v_lshl_add_u32 v43, v40, 10, v43")
    A("s_and_b32 s47, s46, 1"); A("s_lshl_b32 s44, s47, 13"); A("s_lshl_b32 s45, s22, 7"); A("s_add_u32 s44, s44, s45"); A(f"v_add_u32 v{VD}, s44, v43")
    A("s_lshr_b32 s45, s46, 1"); A("s_mul_i32 s60, s45, 704512"); A(f"s_mul_i32 s45, s45, {KH}"); A("s_lshl_b32 s47, s47, 10"); A("s_add_u32 s47, s47, s45")
    A("s_lshr_b32 s44, s2, 3"); A("s_lshl_b32 s44, s44, 2"); A("s_add_u32 s44, s44, s46")
    A("v_mul_u32_u24 v26, 688, v1"); A("v_add_u32 v26, s44, v26"); A("v_lshlrev_b32 v26, 10, v26"); A("v_add_u32 v26, 384, v26")
    A("v_cmp_gt_u32 vcc, 2, v1"); A("v_cndmask_b32 v26, v46, v26, vcc"); A("s_mov_b32 s101, 0")
    A("s_waitcnt lgkmcnt(0)")
    A("s_and_b32 s62, s62, 0xfffffff0"); A("s_add_u32 s62, s62, 16"); A("s_getreg_b32 s100, hwreg(HW_REG_XCC_ID, 0, 4)"); A("s_or_b32 s100, s100, s62")
    A("v_mov_b32 v45, s62"); A("v_mov_b32 v46, 0"); A(f"v_mov_b32 v44, {MISC}")
    A(f"s_waitcnt vmcnt({NS - 4 + 2*cfg.wpf + (cfg.wwarm == 2)}) lgkmcnt(0)"); A("s_barrier")
    stamp(cfg, A, 4)
    A("s_cmp_eq_u32 s46, 0"); A("s_cbranch_scc0 K_uni")
    A(f"ds_read_b128 {vr(T,4)}, v44"); A("s_waitcnt lgkmcnt(0)")
    A(f"v_and_b32 v{T}, v{T}, v{T+1}"); A(f"v_and_b32 v{T+2}, v{T+2}, v{T+3}"); A(f"v_and_b32 v{T}, v{T}, v{T+2}")
    A(f"v_cmp_eq_u32 vcc, 0, v{T}"); A("s_cbranch_vccz K_uni")
    A("buffer_wbl2 sc1"); A("s_waitcnt vmcnt(0)")
    A("v_and_b32 v44, 3, v1"); A("v_lshlrev_b32 v44, 2, v44"); A("s_lshl_b32 s44, s17, 4"); A("v_add_u32 v44, s44, v44")
    A(f"s_add_u32 s44, s54, {WS_FS - WS_FF}")
    A("s_mov_b64 exec, 15"); A("buffer_store_dword v45, v44, s[40:43], s44 offen sc1"); A("s_mov_b64 exec, -1")
    A("s_waitcnt vmcnt(0)")
    A("K_uni:")
    A("s_mov_b32 s48, 6")
    B = head() + x_step(cfg, XO, XL) + ["s_mov_b32 m0, s49"]
    for d in x_dma(cfg, XO, XL) + wd_dma(): B += d
    B += dgen()
    if cfg.c3: B += [f"buffer_load_dword v{T+4}, v26, s[96:99], s101 offen", "s_add_u32 s101, s101, 131072"]
    B += tail() + [f"s_waitcnt vmcnt({NS + cfg.c3}) lgkmcnt(0)", "s_barrier", "s_sub_u32 s48, s48, 1", "s_cmp_lg_u32 s48, 0", "s_cbranch_scc1 K_lloop"]
    B = [l.strip() for l in pad(B)]; check_backedge(B)
    A("K_lloop:"); L += B
    def wpart(slot, n, pos0=0):
        for p in range(n):
            A(f"s_add_u32 m0, s47, {slot*SLOT + (pos0+p)*2048}")
            A(f"buffer_load_dwordx4 v{VD}, s[96:99], s60 offen lds"); A("s_add_u32 s60, s60, 16384")
    wpart(2, 13)
    A("s_waitcnt vmcnt(13)"); A("s_barrier")
    wpart(0, 13)
    A("s_barrier")
    stamp(cfg, A, 5)
    A("s_lshr_b32 s44, s46, 1"); A(f"s_mul_i32 s44, s44, {KH}"); A("s_and_b32 s45, s46, 1"); A("s_lshl_b32 s45, s45, 11"); A("s_add_u32 s44, s44, s45")
    A(f"s_add_u32 s44, s44, {SLOT + 22528}"); A("v_add_u32 v42, s44, v63")
    A("v_lshrrev_b32 v43, 4, v1"); A("v_lshlrev_b32 v43, 16, v43"); A("v_and_b32 v44, 15, v1"); A("v_lshl_add_u32 v43, v44, 4, v43")
    A("s_lshl_b32 s44, s46, 19"); A("s_lshl_b32 s45, s16, 12"); A("s_add_u32 s44, s44, s45"); A("s_lshl_b32 s45, s17, 8"); A("s_add_u32 s44, s44, s45")
    A(f"s_add_u32 s44, s44, {WS_AP}"); A("s_add_u32 s45, s44, 0x40000")
    A("s_lshl_b32 s50, s17, 4"); A("s_add_u32 s50, s50, s16"); A("s_lshl_b32 s50, s50, 7"); A("s_lshl_b32 s51, s46, 2"); A("s_add_u32 s50, s50, s51"); A(f"s_add_u32 s50, s50, {WS_F3}")
    A("s_waitcnt lgkmcnt(0)")
    A("s_waitcnt vmcnt(13)"); A("s_barrier")
    A(f"ds_read_b128 {vr(T,4)}, v42"); A(f"ds_read_b128 {vr(T+4,4)}, v42 offset:1024")
    A("s_waitcnt lgkmcnt(1)"); A(f"buffer_store_dwordx4 {vr(T,4)}, v43, s[40:43], s44 offen sc1")
    A("s_waitcnt lgkmcnt(0)"); A(f"buffer_store_dwordx4 {vr(T+4,4)}, v43, s[40:43], s45 offen sc1")
    A("s_barrier")
    wpart(1, 11); wpart(2, 6)
    A("s_waitcnt vmcnt(17)")
    A("s_mov_b64 exec, 1"); A("buffer_store_dword v45, v46, s[40:43], s50 offen sc1"); A("s_mov_b64 exec, -1")
    stamp(cfg, A, 6)
    A("s_cmp_eq_u32 s46, 0"); A("s_cbranch_scc0 K_l1")
    A("v_lshlrev_b32 v42, 2, v1"); A("s_add_u32 s54, s54, 256"); A(f"s_add_u32 s55, s54, {WS_FS - WS_FF}")
    A("v_and_b32 v44, 3, v1"); A("v_lshlrev_b32 v44, 2, v44"); A("s_lshl_b32 s44, s17, 4"); A("v_add_u32 v44, s44, v44")
    def safe2():
        A("s_mov_b64 exec, 15"); A("buffer_store_dword v45, v44, s[40:43], s55 offen sc1"); A("s_mov_b64 exec, -1")
    def own_then_safe2():
        poll(A, "K_p2own", 44, None, "s54", T, safe_tag="s100"); safe2()
    poll(A, "K_p2", 42, "s54", "s55", T, on_timeout=own_then_safe2)
    stamp(cfg, A, 7)
    A("s_barrier")
    safe2()
    A("s_branch K_l3")
    A("K_l1:")
    A("s_sub_u32 s44, 7, s22"); A("s_cmp_lt_u32 s22, 4"); A("s_cselect_b32 s44, s22, s44"); A("s_lshl_b32 s44, s44, 13")
    A(f"s_add_u32 s50, s44, {WS_F3}"); A("s_add_u32 s44, s44, 8192"); A("s_and_b32 s44, s44, 0x7fff"); A(f"s_add_u32 s51, s44, {WS_F3}")
    A("v_lshlrev_b32 v42, 7, v1"); A("v_and_b32 v43, 0x7ff, v42")
    A("s_barrier")
    stamp(cfg, A, 8)
    A("s_cmp_eq_u32 s46, 1"); A("s_cbranch_scc0 K_l2")
    poll(A, "K_p3a", 42, None, "s50", T, x4=True)
    A("s_branch K_l3")
    A("K_l2:")
    A("s_cmp_eq_u32 s46, 2"); A("s_cbranch_scc0 K_l4")
    poll(A, "K_p3b", 43, None, "s51", T, x4=True)
    A("s_branch K_l3")
    A("K_l4:")
    if cfg.wb and cfg.hst == 'plain':
        A("s_waitcnt vmcnt(0)"); A("s_barrier")
        A("s_cmp_eq_u32 s17, 0"); A("s_cbranch_scc0 K_end")
        A("buffer_wbl2 sc1"); A("s_waitcnt vmcnt(0)"); A("s_endpgm")
    A("K_l3:")
    stamp(cfg, A, 9)
    A("s_waitcnt vmcnt(0)"); A("s_barrier")
    stamp(cfg, A, 10); rstamp(cfg, A, 15); dump(cfg, A)
    A("s_cmp_eq_u32 s2, 0"); A("s_cbranch_scc0 K_end"); A("s_cmp_eq_u32 s46, 2"); A("s_cbranch_scc0 K_end")
    A("v_lshlrev_b32 v42, 7, v1")
    for q in range(4):
        A(f"s_mov_b32 s50, {WS_F3 + 8192*q}")
        poll(A, f"K_pe{q}", 42, None, "s50", T, x4=True)
    A(f"s_mov_b32 s50, {WS_E}"); A("s_mov_b64 exec, 1"); A("buffer_store_dword v45, v46, s[40:43], s50 offen sc1")
    A("s_endpgm")
    return L

def wave_sum(A, regs, t):
    for ctl in ("quad_perm:[1,0,3,2]", "quad_perm:[2,3,0,1]", "row_half_mirror", "row_mirror"):
        for r in regs: A(f"v_add_f32_dpp v{r}, v{r}, v{r} {ctl} row_mask:0xf bank_mask:0xf")
    for sw in ("v_permlane16_swap_b32", "v_permlane32_swap_b32"):
        for r, u in zip(regs, t): A(f"v_mov_b32 v{u}, v{r}")
        for r, u in zip(regs, t): A(f"{sw} v{r}, v{u}")
        for r, u in zip(regs, t): A(f"v_add_f32 v{r}, v{r}, v{u}")

def compute(cfg):
    L = []; A = L.append
    AX, AD, AW = 48, 52, 56
    FB = [64, 96]; ACC = 128; WR, WI = 32, 40
    XP, VO = 240, 248
    RW = 64
    A("s_lshr_b32 s48, s17, 2"); tile_c(A, "s47", "s48")
    A("s_and_b32 s44, s17, 3"); A("s_lshl_b32 s44, s44, 3"); A("s_lshl_b32 s45, s46, 1"); A("s_add_u32 s44, s44, s45"); A("s_lshl_b32 s44, s44, 6")
    A("s_add_u32 s50, s47, s44"); A("s_lshl_b32 s50, s50, 10"); A("s_add_u32 s51, s50, 65536")
    A("s_waitcnt lgkmcnt(0)")
    srd(A, 24, "s4", "s5", 2097152)
    A(f"buffer_load_dwordx4 {vr(RW,4)}, v63, s[24:27], s50 offen"); A(f"buffer_load_dwordx4 {vr(RW+4,4)}, v63, s[24:27], s51 offen")
    stamp(cfg, A, 2)
    srd(A, 40, "s6", "s7", WS_SIZE)
    A("s_lshl_b32 s55, s16, 17"); A(f"s_add_u32 s55, s55, {WS_XN}")
    A("s_lshl_b32 s44, s17, 3"); A("s_lshl_b32 s45, s46, 1"); A("s_add_u32 s44, s44, s45"); A("s_lshl_b32 s44, s44, 10"); A("s_add_u32 s101, s55, s44")
    A("v_and_b32 v7, 15 if cfg.xnst == 'plain' else 0, v1".replace("15 if cfg.xnst == 'plain' else 0", "15" if cfg.xnst == "plain" else "0")); A("v_lshlrev_b32 v7, 7, v7")
    A("buffer_load_dword v2, v7, s[40:43], s101 offen sc1")
    A(f"s_add_u32 s28, s6, {WS_E}"); A("s_addc_u32 s29, s7, 0"); A("s_load_dword s62, s[28:29], 0")
    A("s_and_b32 s22, s17, 7"); A("s_lshr_b32 s23, s17, 3"); A("s_lshl_b32 s44, s16, 1"); A("s_add_u32 s23, s23, s44")
    A("s_lshr_b32 s48, s46, 1"); A("s_and_b32 s49, s46, 1")
    A("s_lshl_b32 s52, s49, 5"); A("s_add_u32 s52, s52, s23")
    A("s_lshl_b32 s44, s22, 6"); A("s_lshl_b32 s45, s48, 5"); A("s_add_u32 s53, s44, s45")
    A("v_lshrrev_b32 v7, 2, v1"); A("v_lshrrev_b32 v8, 2, v7"); A("v_xor_b32 v8, v8, v1"); A("v_and_b32 v8, 3, v8")
    A("v_lshlrev_b32 v7, 16, v7"); A("v_lshl_add_u32 v7, v8, 4, v7")
    A("s_lshl_b32 s44, s52, 10"); A("s_lshl_b32 s45, s53, 1"); A("s_add_u32 s44, s44, s45"); A(f"v_add_u32 v{VO}, s44, v7")
    A(f"v_add_u32 v{VO+1}, 0x100000, v{VO}")
    srd(A, 32, "s58", "s59", 2097152)
    if cfg.tlb:
        A("s_mov_b64 exec, 1"); A(f"buffer_load_dword v253, v{VO}, s[32:35], 0 offen sc1")
        A("s_mov_b32 exec_lo, 0"); A("s_mov_b32 exec_hi, 0x80000000"); A(f"buffer_load_dword v254, v{VO+1}, s[32:35], 0 offen sc1"); A("s_mov_b64 exec, -1")
    A(f"s_mov_b32 s61, {SLOT}")
    A("s_min_u32 s44, s17, 6"); A("s_mul_i32 s20, s17, 5"); A("s_add_u32 s20, s20, s44")
    A("s_cmp_lt_u32 s17, 6"); A("s_cselect_b32 s21, 6, 5")
    tile_c(A, "s47", "s46")
    A("v_and_b32 v3, 31, v1"); A("v_lshrrev_b32 v4, 5, v1")
    A("v_lshrrev_b32 v5, 1, v3"); A("v_and_b32 v5, 7, v5"); A("v_xor_b32 v5, v5, v4"); A("v_lshlrev_b32 v5, 4, v5")
    A("v_lshl_add_u32 v6, v3, 7, v5"); A("s_mul_i32 s54, s46, 13312"); A("v_add_u32 v6, s54, v6")
    A("v_lshrrev_b32 v7, 4, v1"); A("v_and_b32 v7, 1, v7")
    A("v_lshrrev_b32 v8, 2, v1"); A("v_and_b32 v8, 3, v8")
    A("v_lshl_add_u32 v9, v8, 1, v7")
    A(f"v_mul_u32_u24 v10, {KH}, v4"); A("v_lshl_add_u32 v10, v7, 10, v10"); A("v_lshl_add_u32 v10, v8, 8, v10")
    A("v_and_b32 v11, 3, v1"); A("v_lshl_add_u32 v10, v11, 3, v10"); A("v_add_u32 v10, 5120, v10")
    for q in range(4): A(f"v_xor_b32 v{AX+q}, {32*q}, v6")
    if cfg.dgen:
        for q in range(4): A(f"v_add_u32 v{AD+q}, {4096 + q*13312}, v63")
    else:
        A("v_lshrrev_b32 v12, 3, v3"); A("v_mul_u32_u24 v12, 13312, v12"); A("v_and_b32 v13, 7, v3"); A("v_lshl_add_u32 v12, v13, 7, v12")
        A("v_add_u32 v12, v12, v5"); A("v_add_u32 v12, 4096, v12")
        for q in range(4): A(f"v_xor_b32 v{AD+q}, {32*q}, v12")
    for u in range(6):
        A(f"v_xor_b32 v12, {u}, v9"); A(f"v_lshl_add_u32 v{AW+u}, v12, 5, v10")
    XO, XL = 28, 112
    x_offsets(A, XO, XL)
    A("v_cvt_f32_u32 v12, v3"); A(f"v_mul_f32 v12, {f32(-1/32)}, v12")
    A("v_lshlrev_b32 v13, 2, v4"); A("v_cvt_f32_u32 v13, v13"); A("v_mul_f32 v13, v12, v13")
    for kap in range(2):
        for n in range(4):
            for b in range(2):
                idx = 2*n + b; j = 16*kap + 8*(idx//4) + idx % 4
                A(f"v_fmamk_f32 v{14+b}, v12, {f32(j)}, v13")
                A(f"v_cos_f32 v{16+b}, v{14+b}"); A(f"v_sin_f32 v{18+b}, v{14+b}")
            A(f"v_cvt_pk_bf16_f32 v{WR+4*kap+n}, v16, v17"); A(f"v_cvt_pk_bf16_f32 v{WI+4*kap+n}, v18, v19")
    for r in range(112): A(f"v_mov_b32 v{ACC+r}, 0")
    stamp(cfg, A, 3)
    A(f"s_waitcnt vmcnt({1 + 2*cfg.tlb})")
    if cfg.stamps: A("s_memtime s[94:95]"); A("s_waitcnt lgkmcnt(0)"); A("s_mov_b32 s70, s94")
    U = [96, 104]; S = [14, 15]; Q = [16, 17]; TT = [18, 19]
    for k in range(2):
        for r in range(4):
            A(f"v_lshlrev_b32 v{U[k]+2*r}, 16, v{RW+4*k+r}"); A(f"v_and_b32 v{U[k]+2*r+1}, 0xffff0000, v{RW+4*k+r}")
    for k in range(2): A(f"v_add_f32 v{S[k]}, v{U[k]}, v{U[k]+1}")
    for r in range(2, 8):
        for k in range(2): A(f"v_add_f32 v{S[k]}, v{S[k]}, v{U[k]+r}")
    wave_sum(A, S, TT)
    A(f"s_mov_b32 s44, {f32(-1/512)}")
    for r in range(8):
        for k in range(2): A(f"v_fma_f32 v{U[k]+r}, v{S[k]}, s44, v{U[k]+r}")
    for k in range(2): A(f"v_mul_f32 v{Q[k]}, v{U[k]}, v{U[k]}")
    for r in range(1, 8):
        for k in range(2): A(f"v_fmac_f32 v{Q[k]}, v{U[k]+r}, v{U[k]+r}")
    wave_sum(A, Q, TT)
    A(f"v_mov_b32 v20, {f32(1e-5)}")
    for k in range(2): A(f"v_fmamk_f32 v{Q[k]}, v{Q[k]}, {f32(1/512)}, v20")
    for k in range(2): A(f"v_rsq_f32 v{Q[k]}, v{Q[k]}")
    if cfg.skew:
        for k in range(2):
            A(f"s_lshl_b32 s44, s46, 1"); A(f"s_add_u32 s44, s44, {k}"); A("s_lshl_b32 s44, s44, 7")
            A(f"v_add_u32 v{22+k}, s44, v63"); A(f"v_and_b32 v{22+k}, 1023, v{22+k}")
    for k in range(2):
        for r in range(8): A(f"v_mul_f32 v{U[k]+r}, v{U[k]+r}, v{Q[k]}")
        for r in range(4): A(f"v_cvt_pk_bf16_f32 v{RW+4*k+r}, v{U[k]+2*r}, v{U[k]+2*r+1}")
        A(f"buffer_store_dwordx4 {vr(RW+4*k,4)}, v{22+k if cfg.skew else 63}, s[40:43], s101 offen offset:{1024*k}" + (" sc1" if cfg.xnst == "sc1" else ""))
    stamp(cfg, A, 4)
    A("s_waitcnt lgkmcnt(0)")
    A("s_and_b32 s62, s62, 0xfffffff0"); A("s_add_u32 s62, s62, 16"); A("s_getreg_b32 s100, hwreg(HW_REG_XCC_ID, 0, 4)"); A("s_or_b32 s100, s100, s62")
    A("s_lshl_b32 s60, s16, 12"); A(f"s_add_u32 s60, s60, {WS_FF}")
    A("s_lshl_b32 s44, s17, 4"); A("s_lshl_b32 s45, s46, 2"); A("s_add_u32 s44, s44, s45")
    A(f"v_mov_b32 v{VO+3}, s44"); A(f"v_mov_b32 v{VO+4}, s100"); A("v_mov_b32 v21, 1")
    A("s_waitcnt vmcnt(0)")
    A("s_mov_b64 exec, 1")
    A(f"buffer_store_dword v{VO+4}, v{VO+3}, s[40:43], s60 offen")
    A("s_mov_b64 exec, -1")
    def safe0():
        A(f"s_add_u32 s45, s60, {WS_FS - WS_FF}")
        A("s_mov_b64 exec, 1"); A(f"buffer_store_dword v{VO+4}, v{VO+3}, s[40:43], s45 offen sc1"); A("s_mov_b64 exec, -1")
    stamp(cfg, A, 5)
    A(f"buffer_load_dwordx4 {vr(RW+8,4)}, v{VO}, s[24:27], 0 offen"); A(f"buffer_load_dwordx4 {vr(RW+12,4)}, v{VO+1}, s[24:27], 0 offen")
    A("v_and_b32 v12, 15, v1"); A("v_lshlrev_b32 v12, 2, v12"); A("s_lshl_b32 s44, s46, 6"); A("v_add_u32 v12, s44, v12")
    def own_then_safe0():
        A("v_and_b32 v14, 3, v1"); A("v_lshlrev_b32 v14, 2, v14"); A("s_lshl_b32 s44, s17, 4"); A("v_add_u32 v14, s44, v14")
        poll(A, "K_p0own", 14, None, "s60", 13, safe_tag="s100")
        A("buffer_wbl2 sc1"); A("s_waitcnt vmcnt(0)")
        A(f"s_add_u32 s45, s60, {WS_FS - WS_FF}"); A("v_mov_b32 v15, s62"); A("v_mov_b32 v21, 0")
        A("s_mov_b64 exec, 15"); A("buffer_store_dword v15, v14, s[40:43], s45 offen sc1"); A("s_mov_b64 exec, -1")
    poll(A, "K_p0", 12, "s60", "s45", 13, on_timeout=own_then_safe0)
    stamp(cfg, A, 6)
    for s in range(2):
        L += x_step(cfg, XO, XL); A(f"s_add_u32 m0, s54, {s*SLOT}")
        for d in x_dma(cfg, XO, XL): L += d
        A("s_add_u32 s18, s18, 1"); A("s_and_b32 s18, s18, 7")
    A("s_lshl_b32 s44, s46, 11"); A(f"s_add_u32 s44, s44, {2*SLOT}"); A("v_add_u32 v12, s44, v63")
    A("v_lshrrev_b32 v13, 2, v3"); A("v_and_b32 v13, 3, v13"); A("v_lshlrev_b32 v13, 4, v13")
    A("v_lshl_add_u32 v13, v3, 6, v13"); A(f"v_lshl_add_u32 v{VO+2}, v4, 3, v13"); A(f"v_add_u32 v13, s44, v{VO+2}")
    A(f"ds_write_b128 v12, {vr(RW+8,4)}"); A(f"ds_write_b128 v12, {vr(RW+12,4)} offset:1024")
    for jj in range(4): A(f"v_xor_b32 v{14+jj}, {16*jj}, v13")
    A("s_waitcnt lgkmcnt(0)")
    for jj in range(4): A(f"ds_read_b64 {vr(XP+2*jj,2)}, v{14+jj}")
    A("s_lshl_b32 s44, s46, 2"); A(f"s_add_u32 s44, s44, {MISC}"); A("v_mov_b32 v20, s44"); A("ds_write_b32 v20, v21"); A(f"v_mov_b32 v20, {MISC}")
    A("s_mul_i32 s101, s47, 86"); A("s_add_u32 s101, s101, s20"); A("s_lshl_b32 s101, s101, 10")
    A("s_lshl_b32 s44, s21, 3"); A("v_cmp_gt_u32 vcc, s44, v1"); A("v_lshlrev_b32 v21, 7, v1"); A(f"v_mov_b32 v22, {OOB}"); A("v_cndmask_b32 v28, v22, v21, vcc")
    if cfg.prio: A("s_setprio 1")
    def reads(buf, q):
        R = [f"ds_read_b128 {vr(buf,4)}, v{AX+q}"]
        for u in range(6):
            R.append(f"ds_read_b64_tr_b16 {vr(buf+8+4*u,2)}, v{AW+u} offset:{q*2048}")
            R.append(f"ds_read_b64_tr_b16 {vr(buf+10+4*u,2)}, v{AW+u} offset:{q*2048+WREG}")
        R.append(f"ds_read_b128 {vr(buf+4,4)}, v{AD+q}")
        return R
    A("s_mov_b32 s50, 0"); A("s_mov_b32 s51, 8")
    A("s_waitcnt vmcnt(4) lgkmcnt(0)"); A("s_barrier")
    stamp(cfg, A, 7)
    if cfg.stamps: A("s_waitcnt lgkmcnt(0)")
    A("ds_read_b128 v[24:27], v20")
    L += reads(FB[0], 0)
    B = []; C = B.append
    for q in range(4):
        cur, nxt = FB[q % 2], FB[(q+1) % 2]
        if q == 3:
            C("s_cmp_eq_u32 s51, 8"); C("s_cbranch_scc0 K_nov"); C("s_waitcnt vmcnt(0)"); C("K_nov:")
            C("s_waitcnt lgkmcnt(0)"); C("s_barrier")
        else:
            C("s_waitcnt lgkmcnt(0)")
        M = [f"v_mfma_f32_32x32x16_bf16 {vr(ACC+96,16)}, {vr(cur,4)}, {vr(cur+4,4)}, {vr(ACC+96,16)}"]
        M += [f"v_mfma_f32_32x32x16_bf16 {vr(ACC+16*u,16)}, {vr(cur+8+4*u,4)}, {vr(cur,4)}, {vr(ACC+16*u,16)}" for u in range(6)]
        F = reads(nxt, (q+1) % 4)
        if q == 0 and cfg.hpre and cfg.hst == 'plain':
            F += [[f"s_cmp_eq_u32 s51, {cfg.hpre}", "s_cbranch_scc0 K_nop", "buffer_load_dword v255, v28, s[40:43], s101 offen sc1", "K_nop:"]]
        if q == 1:
            F += ["s_add_u32 s50, s50, 1", "s_cmp_eq_u32 s50, 3", f"s_cselect_b32 s44, {(-2*SLOT) & 0xffffffff}, s61", "s_cselect_b32 s50, 0, s50"]
        if q == 2:
            F += [f"v_add_u32 v{r}, s44, v{r}" for r in range(AX, AX+14)]
        if q == 3:
            F += ["s_sub_u32 s51, s51, 1", "s_cmp_lg_u32 s51, 0"]
        B += interleave(M, F, per=4 if q == 2 else 3)
    C("s_cbranch_scc1 K_cloop")
    B = [l.strip() for l in pad(B)]; check_backedge(B)
    A(".p2align 3"); A("K_cloop:"); L += B
    stamp(cfg, A, 8)
    ZB, P, Q2, T = 8, 96, 112, 16
    Z = ACC + 96
    A("s_mov_b32 s50, s101")
    A("v_and_b32 v24, v24, v25"); A("v_and_b32 v26, v26, v27"); A("v_and_b32 v24, v24, v26"); A("v_cmp_eq_u32 vcc, 0, v24")
    A("s_waitcnt lgkmcnt(0)")
    for n in range(8): A(f"v_cvt_pk_bf16_f32 v{ZB+n}, v{Z+2*n}, v{Z+2*n+1}")
    A(f"v_mfma_f32_32x32x16_bf16 {vr(P,16)}, {vr(WR,4)}, {vr(ZB,4)}, 0")
    A(f"v_mfma_f32_32x32x16_bf16 {vr(Q2,16)}, {vr(WI,4)}, {vr(ZB,4)}, 0")
    A(f"v_mfma_f32_32x32x16_bf16 {vr(P,16)}, {vr(WR+4,4)}, {vr(ZB+4,4)}, {vr(P,16)}")
    A(f"v_mfma_f32_32x32x16_bf16 {vr(Q2,16)}, {vr(WI+4,4)}, {vr(ZB+4,4)}, {vr(Q2,16)}")
    def glu(u, A, fl):
        a = ACC + 16*u; t = T + 4*(u % 4)
        for r in range(8): A(f"v_mul_f32 v{a+r}, v{a+r}, v{a+8+r}")
        for n in range(4): A(f"v_cvt_pk_bf16_f32 v{t+n}, v{a+2*n}, v{a+2*n+1}")
        A(f"buffer_store_dwordx4 {vr(t,4)}, v63, s[40:43], s50 offen{fl}"); A("s_add_u32 s50, s50, 1024")
    fl = "" if cfg.hst == "plain" else " sc1"
    if cfg.hst == "plain": A("s_cbranch_vccnz K_gslow")
    for u in range(5): glu(u, A, fl)
    A("s_cmp_eq_u32 s21, 5"); A("s_cbranch_scc1 K_no5"); glu(5, A, fl); A("K_no5:")
    slow = ["K_gslow:"]
    for u in range(5): glu(u, slow.append, " sc1")
    slow += ["s_cmp_eq_u32 s21, 5", "s_cbranch_scc1 K_no5"]; glu(5, slow.append, " sc1"); slow.append("s_branch K_no5")
    cfg.slow = slow if cfg.hst == 'plain' else []
    for n in range(8):
        A(f"v_permlane16_swap_b32 v{P+2*n}, v{P+2*n+1}"); A(f"v_permlane16_swap_b32 v{Q2+2*n}, v{Q2+2*n+1}")
    A("v_lshlrev_b32 v12, 10, v4"); A("v_lshl_add_u32 v12, v7, 8, v12"); A("v_and_b32 v13, 15, v1"); A("v_lshl_add_u32 v12, v13, 4, v12")
    A("s_lshl_b32 s44, s46, 2"); A(f"s_add_u32 s44, s44, {SLOT + 22528}"); A("v_add_u32 v12, s44, v12")
    for n in range(8):
        t1 = 8*(n//2) + 2*(n % 2)
        A(f"v_sub_f32 v{P+2*n}, v{P+2*n}, v{Q2+2*n+1}"); A(f"v_add_f32 v{P+2*n+1}, v{P+2*n+1}, v{Q2+2*n}")
        A(f"v_cvt_pk_bf16_f32 v{Q2+2*n}, v{P+2*n}, v{P+2*n+1}")
        A(f"ds_write_b32 v12, v{Q2+2*n} offset:{(t1 % 16)*256 + (t1//16)*KH}")
    A("s_waitcnt lgkmcnt(0)"); A("s_barrier")
    stamp(cfg, A, 9)
    A("s_setprio 0")
    ACC0, ACC1, Y = 16, 32, 48
    HR, AP, XF, MF, WF, T = 64, 128, 160, 176, [208, 216], 224
    PR, NPR = 128, 6
    A("v_add_u32 v5, s53, v3"); A("v_sub_u32 v6, 512, v5"); A("v_and_b32 v6, 255, v6")
    A("s_sub_u32 s44, 32, s23"); A("s_and_b32 s44, s44, 31"); A(f"s_mov_b32 s47, {f32(-1/2048)}")
    A("s_cmp_lt_u32 s22, 4"); A("s_cselect_b32 s54, s23, s44"); A("s_cselect_b64 vcc, -1, 0"); A(f"s_cselect_b32 s47, {f32(1/2048)}, s47")
    A("v_cndmask_b32 v6, v6, v5, vcc"); A("v_lshlrev_b32 v6, 4, v6"); A("v_lshl_add_u32 v6, v4, 12, v6")
    A("v_cmp_eq_u32 vcc, 0, v5"); A(f"v_mov_b32 v7, {OOB}"); A("v_cndmask_b32 v6, v6, v7, vcc")
    A("s_lshl_b32 s54, s54, 16"); A(f"s_add_u32 s54, s54, {WS_AP}")
    A("s_mul_i32 s51, s52, 86"); A("s_mul_i32 s44, s48, 43"); A("s_add_u32 s51, s51, s44"); A("s_lshl_b32 s51, s51, 10")
    A("v_lshrrev_b32 v12, 2, v1"); A("v_and_b32 v12, 3, v12")
    A("v_lshl_add_u32 v13, v4, 2, v12"); A("v_lshlrev_b32 v13, 7, v13")
    A("v_lshrrev_b32 v14, 4, v1"); A("v_and_b32 v14, 1, v14"); A("v_lshl_add_u32 v13, v14, 5, v13")
    A("v_and_b32 v14, 3, v1"); A("v_lshl_add_u32 v13, v14, 3, v13"); A(f"s_mul_i32 s44, s48, {KH}"); A("v_add_u32 v13, s44, v13")
    A("v_lshrrev_b32 v12, 1, v12"); A("v_xor_b32 v12, s48, v12")
    A("v_lshl_add_u32 v8, v12, 6, v13"); A("v_xor_b32 v9, 64, v8")
    for s in (1, 2):
        A(f"v_add_u32 v{8+2*s}, {s*SLOT}, v8"); A(f"v_add_u32 v{9+2*s}, {s*SLOT}, v9")
    for st in range(NPR):
        for k, (v, o) in enumerate(((12, 0), (12, 1024), (13, 0), (13, 1024))):
            A(f"ds_read_b64_tr_b16 {vr(PR+8*st+2*k,2)}, v{v} offset:{st*2048+o}")
    A("s_waitcnt lgkmcnt(0)"); A("s_barrier")
    A(f"v_lshl_add_u32 v{T}, v3, 6, s52"); A(f"v_cvt_f32_u32 v{T}, v{T}"); A(f"v_mul_f32 v{T}, s47, v{T}")
    A(f"v_lshlrev_b32 v{T+1}, 1, v4"); A(f"v_cvt_f32_u32 v{T+1}, v{T+1}"); A(f"v_mul_f32 v{T+1}, v{T}, v{T+1}")
    for k in range(8):
        for w4 in range(4):
            c = 4*k + [0, 1, 32, 33][w4]; a = T + 2 + 3*(w4 % 2)
            A(f"v_fmamk_f32 v{a}, v{T}, {f32(c)}, v{T+1}")
            A(f"v_cos_f32 v{a+1}, v{a}"); A(f"v_sin_f32 v{a+2}, v{a}")
            if w4 % 2 == 1:
                A(f"v_cvt_pk_bf16_f32 v{MF+4*k+w4-1}, v{T+3}, v{T+4}")
                A(f"v_cvt_pk_bf16_f32 v{MF+4*k+w4}, v{T+6}, v{T+7}")
    stamp(cfg, A, 10)
    A("s_add_u32 s60, s60, 256")
    A("s_waitcnt vmcnt(0)")
    A("s_mov_b64 exec, 1")
    A(f"buffer_store_dword v{VO+4}, v{VO+3}, s[40:43], s60 offen")
    A("s_mov_b64 exec, -1")
    stamp(cfg, A, 11)
    for r in range(32): A(f"v_mov_b32 v{ACC0+r}, 0")
    A("v_lshlrev_b32 v14, 4, v1")
    A("s_barrier")
    stamp(cfg, A, 12)
    if cfg.stamps: A("s_waitcnt lgkmcnt(0)")
    NST, AH = 43, cfg.ahead
    queue = ["flag"]
    def hload(st):
        A(f"buffer_load_dwordx4 {vr(HR+4*(st % 16),4)}, v14, s[40:43], s51 offen sc1"); A("s_add_u32 s51, s51, 1024"); queue.append(("h", st))
    def waitfor(item):
        n = len(queue) - 1 - queue.index(item)
        A(f"s_waitcnt vmcnt({n})")
    def waddr(st):
        if st < 13: return 12, st*2048
        if st < 26: return 8, (st-13)*2048
        if st < 37: return 10, (st-26)*2048
        return 12, (st-37)*2048
    def wreads(st):
        b = WF[st % 2]; v, o = waddr(st)
        return [f"ds_read_b64_tr_b16 {vr(b,2)}, v{v} offset:{o}", f"ds_read_b64_tr_b16 {vr(b+2,2)}, v{v} offset:{o+1024}",
                f"ds_read_b64_tr_b16 {vr(b+4,2)}, v{v+1} offset:{o}", f"ds_read_b64_tr_b16 {vr(b+6,2)}, v{v+1} offset:{o+1024}"]
    for st in range(AH): hload(st)
    ydone = False
    for st in range(NST):
        nx = st + 1
        if nx == 26:
            A("s_waitcnt lgkmcnt(0)"); A("s_barrier")
            for k in range(8):
                A(f"buffer_load_dwordx4 {vr(AP+4*k,4)}, v6, s[40:43], s54 offen sc1"); A("s_add_u32 s54, s54, 8192"); queue.append(("a", k))
        if st + AH < NST: hload(st + AH)
        if NPR <= nx < NST: L += wreads(nx)
        if st >= NPR: A(f"s_waitcnt lgkmcnt({4 if nx < NST else 0})")
        waitfor(("h", st))
        b = WF[st % 2] if st >= NPR else PR + 8*st
        h = HR + 4*(st % 16)
        if not ydone and ("a", 7) in queue and queue.index(("a", 7)) < queue.index(("h", st)):
            for k in range(8): A(f"v_mfma_f32_32x32x16_bf16 {vr(Y,16)}, {vr(AP+4*k,4)}, {vr(MF+4*k,4)}, {vr(Y,16) if k else 0}")
            ydone = True
        A(f"v_mfma_f32_32x32x16_bf16 {vr(ACC1,16)}, {vr(b+4,4)}, {vr(h,4)}, {vr(ACC1,16)}")
        A(f"v_mfma_f32_32x32x16_bf16 {vr(ACC0,16)}, {vr(b,4)}, {vr(h,4)}, {vr(ACC0,16)}")
        if st == NPR + 1:
            for n in range(8):
                A(f"v_lshlrev_b32 v{XF+2*n}, 16, v{XP+n}"); A(f"v_and_b32 v{XF+2*n+1}, 0xffff0000, v{XP+n}")
    stamp(cfg, A, 13)
    A("s_lshl_b32 s44, s46, 12"); A("s_xor_b32 s45, s44, 8192")
    A("v_add_u32 v12, s44, v14"); A("v_add_u32 v13, s45, v14")
    for q in range(4): A(f"ds_write_b128 v12, {vr(ACC1+4*q,4)} offset:{1024*q}")
    if not ydone:
        waitfor(("a", 7))
        for k in range(8): A(f"v_mfma_f32_32x32x16_bf16 {vr(Y,16)}, {vr(AP+4*k,4)}, {vr(MF+4*k,4)}, {vr(Y,16) if k else 0}")
    A("s_lshl_b32 s44, s46, 11"); A("s_add_u32 s44, s44, 16384"); A(f"v_add_u32 v8, s44, v{VO+2}"); A("v_add_u32 v15, s44, v14")
    for jj in range(1, 4): A(f"v_xor_b32 v{8+jj}, {16*jj}, v8")
    A(f"s_mov_b32 s44, {f32(-1.4426950408889634)}")
    A("s_waitcnt lgkmcnt(0)"); A("s_barrier")
    for q in range(4): A(f"ds_read_b128 {vr(ACC1+4*q,4)}, v13 offset:{1024*q}")
    E = HR
    for q in range(4):
        R = range(4*q, 4*q+4)
        A(f"s_waitcnt lgkmcnt({3-q})" if q < 3 else "s_waitcnt lgkmcnt(0)")
        for r in R: A(f"v_add_f32 v{ACC0+r}, v{ACC0+r}, v{ACC1+r}")
        for r in R: A(f"v_mul_f32 v{E+r}, s44, v{ACC0+r}")
        for r in R: A(f"v_exp_f32 v{E+r}, v{E+r}")
        for r in R: A(f"v_mul_f32 v{ACC0+r}, v{ACC0+r}, v{Y+r}")
        for r in R: A(f"v_add_f32 v{E+r}, 1.0, v{E+r}")
        for r in R: A(f"v_rcp_f32 v{E+r}, v{E+r}")
        for r in R: A(f"v_fma_f32 v{ACC0+r}, v{ACC0+r}, v{E+r}, v{XF+r}")
        A(f"v_cvt_pk_bf16_f32 v{T+2*q}, v{ACC0+4*q}, v{ACC0+4*q+1}"); A(f"v_cvt_pk_bf16_f32 v{T+2*q+1}, v{ACC0+4*q+2}, v{ACC0+4*q+3}")
    for q in range(4): A(f"ds_write_b64 v{8+q}, {vr(T+2*q,2)}")
    A("s_waitcnt lgkmcnt(0)")
    A(f"ds_read_b128 {vr(E,4)}, v15"); A(f"ds_read_b128 {vr(E+4,4)}, v15 offset:1024")
    A("s_waitcnt lgkmcnt(1)"); A(f"buffer_store_dwordx4 {vr(E,4)}, v{VO}, s[32:35], 0 offen")
    A("s_waitcnt lgkmcnt(0)"); A(f"buffer_store_dwordx4 {vr(E+4,4)}, v{VO+1}, s[32:35], 0 offen")
    stamp(cfg, A, 14)
    if cfg.stamps: A("s_waitcnt vmcnt(0)")
    rstamp(cfg, A, 15); dump(cfg, A)
    return L

def build(cfg):
    ref = open(f"cdna_kernels/{NAME}.s.ref").read().split("\n")
    head = [l for l in ref if l.startswith(";   offset") or l.startswith("; Kernarg")]
    kn = NAME + "_kernel"
    body = ["K_start:"] + prologue(cfg) + loader(cfg) + ["K_compute:"] + compute(cfg) + ["K_end:", "s_endpgm", "K_stop:"] + cfg.slow
    out = head + [f"; @launch grid=(256,1,1) block=(512,1,1) lds={LDS}", '.amdgcn_target "amdgcn-amd-amdhsa--gfx950"', ".text",
                  f".globl {kn}", ".p2align 8", f".type {kn},@function", f"{kn}:"] + pad(body)
    out += ['.section .rodata,"a"', ".p2align 6", f""".amdhsa_kernel {kn}
  .amdhsa_next_free_vgpr 256
  .amdhsa_next_free_sgpr 102
  .amdhsa_accum_offset 256
  .amdhsa_group_segment_fixed_size 0
  .amdhsa_kernarg_size 96
  .amdhsa_user_sgpr_count 2
  .amdhsa_user_sgpr_kernarg_segment_ptr 1
  .amdhsa_system_sgpr_workgroup_id_x 1
.end_amdhsa_kernel"""]
    return "\n".join(out) + "\n"

if __name__ == "__main__":
    cfg = Cfg()
    for a in sys.argv[2:]:
        k, v = a.split("="); setattr(cfg, k, (v == "1") if isinstance(getattr(cfg, k), bool) else type(getattr(cfg, k))(v))
    open(sys.argv[1], "w").write(build(cfg))
```

```python
import importlib, sys, re
from asmdsl import pad
M = 4
def probe(G, wave, idx, red, M):
    L = []; A = L.append
    A("s_cmp_ge_u32 s2, 1"); A("s_cbranch_scc1 P_end")
    A("s_load_dwordx2 s[6:7], s[0:1], 88"); A("s_waitcnt lgkmcnt(0)")
    G.srd(A, 40, "s6", "s7", G.WS_SIZE)
    A("v_lshlrev_b32 v1, 9, v0")
    for n, (w, i) in enumerate(((0, 0), (wave, idx))):
        for q in range(4):
            A(f"s_mov_b32 s44, {G.WS_ST + q*64*512 + w*64 + i*4}")
            A(f"buffer_load_dword v{4+4*n+q}, v1, s[40:43], s44 offen")
    A("s_waitcnt vmcnt(0)")
    for q in range(1, 4): A(f"v_min_u32 v4, v4, v{4+q}")
    A("v_readlane_b32 s10, v4, 0")
    for l in range(1, 64): A(f"v_readlane_b32 s12, v4, {l}"); A("s_nop 0"); A("s_min_u32 s10, s10, s12")
    for q in range(4): A(f"v_subrev_u32 v{8+q}, s10, v{8+q}")
    op = {"avg": "add", "max": "max", "min": "min"}[red]
    for q in range(1, 4): A(f"v_{op}_u32 v8, v8, v{8+q}")
    A("v_readlane_b32 s11, v8, 0")
    for l in range(1, 64): A(f"v_readlane_b32 s12, v8, {l}"); A("s_nop 0"); A(f"s_{op}_u32 s11, s11, s12")
    A(f"s_mul_i32 s10, s11, {M}")
    if red == "avg": A("s_lshr_b32 s10, s10, 8")
    A(f"s_min_u32 s10, s10, {5000*max(M,1)}")
    A("s_memrealtime s[14:15]"); A("s_waitcnt lgkmcnt(0)")
    A("P_spin:"); A("s_memrealtime s[16:17]"); A("s_waitcnt lgkmcnt(0)"); A("s_sub_u32 s16, s16, s14"); A("s_cmp_lt_u32 s16, s10"); A("s_cbranch_scc1 P_spin")
    A("P_end:"); A("s_endpgm")
    return L
def mk(gen, opts, name, wave, idx, red, M):
    G = importlib.import_module(gen)
    cfg = G.Cfg(); cfg.stamps = True
    if hasattr(cfg, "blog"): cfg.blog = 0
    for a in opts:
        k, v = a.split("="); setattr(cfg, k, type(getattr(cfg, k))(v))
    s = G.build(cfg).replace("s_memtime", "s_memrealtime")
    kn = G.NAME + "_kernel"
    s = re.sub(r"; @launch grid=\(256,1,1\) block=\(512,1,1\) lds=(\d+)", lambda m: f"; @launch kernel={kn} grid=(256,1,1) block=(512,1,1) lds={m.group(1)}\n; @launch kernel=probe_kernel grid=(1,1,1) block=(64,1,1) lds=0", s)
    code = "\n".join([".globl probe_kernel", ".p2align 8", ".type probe_kernel,@function", "probe_kernel:"] + pad(probe(G, wave, idx, red, M)))
    s = s.replace('.section .rodata,"a"', code + '\n.section .rodata,"a"')
    d = s[s.index(".amdhsa_kernel"):]
    s += ".p2align 6\n" + d.replace(kn, "probe_kernel").replace("next_free_vgpr 256", "next_free_vgpr 16").replace("accum_offset 256", "accum_offset 16")
    open(f"var/{name}.s", "w").write(s)
if __name__ == "__main__":
    gen, prefix, pts = sys.argv[1], sys.argv[2], sys.argv[3]
    mk(gen, sys.argv[4:], f"{prefix}_0", 0, 0, "max", 0)
    for n, p in enumerate(pts.split(",")):
        w, i, red = p.split(":")
        mk(gen, sys.argv[4:], f"{prefix}_{n+1}", int(w), int(i), red, M)
```

```python
import importlib, sys, re
from asmdsl import pad
M = 4
def probe(G, wave, idx, red, M, ida=None):
    L = []; A = L.append
    A("s_cmp_ge_u32 s2, 1"); A("s_cbranch_scc1 P_end")
    A("s_load_dwordx2 s[6:7], s[0:1], 88"); A("s_waitcnt lgkmcnt(0)")
    G.srd(A, 40, "s6", "s7", G.WS_SIZE)
    A("v_lshlrev_b32 v1, 9, v0")
    for n, (w, i) in enumerate((((0, 0) if ida is None else (wave, ida)), (wave, idx))):
        for q in range(4):
            A(f"s_mov_b32 s44, {G.WS_ST + q*64*512 + w*64 + i*4}")
            A(f"buffer_load_dword v{4+4*n+q}, v1, s[40:43], s44 offen")
    A("s_waitcnt vmcnt(0)")
    if ida is not None:
        for q in range(4): A(f"v_sub_u32 v{8+q}, v{8+q}, v{4+q}"); A(f"v_lshrrev_b32 v{8+q}, 4, v{8+q}"); A(f"v_mov_b32 v{4+q}, 0")
    for q in range(1, 4): A(f"v_min_u32 v4, v4, v{4+q}")
    A("v_readlane_b32 s10, v4, 0")
    for l in range(1, 64): A(f"v_readlane_b32 s12, v4, {l}"); A("s_nop 0"); A("s_min_u32 s10, s10, s12")
    for q in range(4): A(f"v_subrev_u32 v{8+q}, s10, v{8+q}")
    op = {"avg": "add", "max": "max", "min": "min"}[red]
    for q in range(1, 4): A(f"v_{op}_u32 v8, v8, v{8+q}")
    A("v_readlane_b32 s11, v8, 0")
    for l in range(1, 64): A(f"v_readlane_b32 s12, v8, {l}"); A("s_nop 0"); A(f"s_{op}_u32 s11, s11, s12")
    A(f"s_mul_i32 s10, s11, {M}")
    if red == "avg": A("s_lshr_b32 s10, s10, 8")
    A(f"s_min_u32 s10, s10, {5000*max(M,1)}")
    A("s_memrealtime s[14:15]"); A("s_waitcnt lgkmcnt(0)")
    A("P_spin:"); A("s_memrealtime s[16:17]"); A("s_waitcnt lgkmcnt(0)"); A("s_sub_u32 s16, s16, s14"); A("s_cmp_lt_u32 s16, s10"); A("s_cbranch_scc1 P_spin")
    A("P_end:"); A("s_endpgm")
    return L
def mk(gen, opts, name, wave, idx, red, M, ida=None):
    G = importlib.import_module(gen)
    cfg = G.Cfg(); cfg.stamps = True
    if hasattr(cfg, "blog"): cfg.blog = 0
    for a in opts:
        k, v = a.split("="); setattr(cfg, k, type(getattr(cfg, k))(v))
    s = G.build(cfg)
    if ida is None: s = s.replace("s_memtime", "s_memrealtime")
    kn = G.NAME + "_kernel"
    s = re.sub(r"; @launch grid=\(256,1,1\) block=\(512,1,1\) lds=(\d+)", lambda m: f"; @launch kernel={kn} grid=(256,1,1) block=(512,1,1) lds={m.group(1)}\n; @launch kernel=probe_kernel grid=(1,1,1) block=(64,1,1) lds=0", s)
    code = "\n".join([".globl probe_kernel", ".p2align 8", ".type probe_kernel,@function", "probe_kernel:"] + pad(probe(G, wave, idx, red, M, ida)))
    s = s.replace('.section .rodata,"a"', code + '\n.section .rodata,"a"')
    d = s[s.index(".amdhsa_kernel"):]
    s += ".p2align 6\n" + d.replace(kn, "probe_kernel").replace("next_free_vgpr 256", "next_free_vgpr 16").replace("accum_offset 256", "accum_offset 16")
    open(f"var/{name}.s", "w").write(s)
if __name__ == "__main__":
    gen, prefix, pts = sys.argv[1], sys.argv[2], sys.argv[3]
    mk(gen, sys.argv[4:], f"{prefix}_0", 0, 0, "max", 0)
    for n, p in enumerate(pts.split(",")):
        w, i, red = p.split(":")
        if "-" in i:
            b, a = i.split("-"); mk(gen, sys.argv[4:], f"{prefix}_{n+1}", int(w), int(b), red, M, int(a))
        else: mk(gen, sys.argv[4:], f"{prefix}_{n+1}", int(w), int(i), red, M)
```

```python
import struct, sys
from asmdsl import pad, check_backedge, interleave

NAME = "recurrent_scan__spectral_fnet__glu_gated_bilinear__prompt"
WS_H, WS_AP = 0, 0x600000
WS_FF, WS_FS, WS_F3, WS_E, WS_RS, WS_CS, WS_ST, WS_SIZE = 0x800000, 0x810000, 0x820000, 0x830000, 0x840000, 0x880000, 0xB00000, 0x1000000
OOB = 0x40000000
SLOT, WREG, KH = 53248, 13312, 26624
LDS = 163840
MISC = 3*SLOT
L_CSF, L_MB, L_RR, L_ZERO = MISC, MISC + 1536, MISC + 2560, MISC + 3072
L_S2, L_S3, L_SW = L_ZERO + 512, L_ZERO + 520, L_ZERO + 528
NFAST, NSAFE = 3000, 400000

def f32(x): return "0x%08x" % struct.unpack("<I", struct.pack("<f", x))[0]
def vr(a, n): return f"v[{a}:{a+n-1}]" if n > 1 else f"v{a}"
def flat(D): return [x for d in D for x in (d if isinstance(d, list) else [d])]

class Cfg:
    rot = "g"
    prio = 1
    stamps = False
    ahead = 12
    codepf = 1
    wwarm = 1
    wpf = 0
    tlb = 1
    c3 = 1
    s3step = 28
    budget = 5
    rpg = 3
    blog = 1
    nodg = 0
    xfake = 0
    noshare = 0
    cdry = 0
    lateadd = 1
    nowr = 0
    dlast = 0
    worder = 1
    nb = '9,18,22,26'
    pre1 = 12
    apub = 10
    w2 = 34
    gpre = 200
    gat = '7,6,5'
    norow = 0
    halfrd = 0
    morder = 1
    fearly = 1
    nog = 0
    gsplit = 0
    b10 = 4
    hld = 'sc1'
    wpfd = 0

def srd(A, reg, lo, hi, size):
    A(f"s_mov_b32 s{reg}, {lo}"); A(f"s_mov_b32 s{reg+1}, {hi}"); A(f"s_mov_b32 s{reg+2}, {size}"); A(f"s_mov_b32 s{reg+3}, 0x20000")

def stamp(cfg, A, i):
    if cfg.stamps: A(f"s_memtime s[{64+2*i}:{65+2*i}]")
def rstamp(cfg, A, i):
    if cfg.stamps: A(f"s_memrealtime s[{64+2*i}:{65+2*i}]")
def dump(cfg, A):
    if not cfg.stamps: return
    A("s_waitcnt lgkmcnt(0)"); A("s_mov_b64 exec, -1")
    for i in range(16): A(f"v_mov_b32 v{16+i}, s{64+2*i}")
    A("s_lshl_b32 s44, s2, 3"); A("s_add_u32 s44, s44, s19"); A("s_lshl_b32 s44, s44, 6"); A(f"s_add_u32 s44, s44, {WS_ST}")
    A("v_mov_b32 v12, 0")
    for q in range(4): A(f"buffer_store_dwordx4 v[{16+4*q}:{19+4*q}], v12, s[40:43], s44 offen offset:{16*q}")

def poll(A, name, vaddr, soff_fast, soff_safe, tmp, x4=False, on_timeout=None):
    ld = f"buffer_load_dwordx2 {vr(tmp,2)}" if x4 else f"buffer_load_dword v{tmp}"
    phases = ([("f", soff_fast, NFAST)] if soff_fast else []) + [("s", soff_safe, NSAFE)]
    for tagc, soff, bound in phases:
        if tagc == "s" and on_timeout: on_timeout()
        A("s_mov_b32 s63, 0")
        A(f"{name}_{tagc}:")
        A(f"{ld}, v{vaddr}, s[40:43], {soff} offen sc1"); A("s_add_u32 s63, s63, 1"); A("s_waitcnt vmcnt(0)")
        if x4:
            A(f"v_xor_b32 v{tmp}, s62, v{tmp}")
            for r in range(1, 2):
                A(f"v_xor_b32 v{tmp+r}, s62, v{tmp+r}"); A(f"v_or_b32 v{tmp}, v{tmp}, v{tmp+r}")
            A(f"v_cmp_ne_u32 vcc, 0, v{tmp}")
        else:
            A(f"v_cmp_ne_u32 vcc, s62, v{tmp}")
        A(f"s_cbranch_vccz {name}_ok")
        if tagc == "s": A("s_sleep 4")
        A(f"s_cmp_lt_u32 s63, {bound}"); A(f"s_cbranch_scc1 {name}_{tagc}")
    A(f"{name}_ok:")

def prologue(cfg):
    L = []; A = L.append
    A("s_cmp_ge_u32 s2, 256"); A("s_cbranch_scc1 K_end")
    rstamp(cfg, A, 0); stamp(cfg, A, 1)
    A("s_load_dwordx2 s[4:5], s[0:1], 0")
    A("s_load_dwordx4 s[12:15], s[0:1], 48")
    A("s_load_dwordx2 s[6:7], s[0:1], 88")
    A("s_load_dwordx4 s[56:59], s[0:1], 64")
    A("v_lshrrev_b32 v2, 6, v0"); A("v_and_b32 v1, 63, v0")
    A("s_and_b32 s18, s2, 7"); A("s_lshr_b32 s17, s2, 3")
    A("v_readfirstlane_b32 s19, v2")
    A("s_lshr_b32 s8, s17, 4"); A("s_and_b32 s17, s17, 15"); A("s_lshl_b32 s16, s18, 1"); A("s_add_u32 s16, s16, s8")
    if cfg.rot == "0": A("s_mov_b32 s18, 0")
    if cfg.rot == "g2": A("s_and_b32 s18, s18, 6")
    if cfg.rot == "g4": A("s_and_b32 s18, s18, 4")
    A("s_and_b32 s46, s19, 3")
    A("v_lshlrev_b32 v63, 4, v1")
    A("s_cmp_lt_u32 s19, 4"); A("s_cbranch_scc1 K_compute")
    return L

def tile_c(A, dst, tile):
    A(f"s_and_b32 s44, {tile}, 1"); A(f"s_lshr_b32 s45, {tile}, 1"); A("s_lshl_b32 s45, s45, 5"); A("s_add_u32 s44, s44, s45")
    A(f"s_lshl_b32 {dst}, s16, 1"); A(f"s_add_u32 {dst}, {dst}, s44")

def w_frag_base(A, h, tmp, xr, base):
    A(f"v_lshrrev_b32 v{tmp}, 4, v1"); A(f"v_and_b32 v{tmp}, 1, v{tmp}")
    A(f"v_lshrrev_b32 v{tmp+1}, 2, v1"); A(f"v_and_b32 v{tmp+1}, 3, v{tmp+1}")
    A(f"v_lshl_add_u32 v{xr}, v{tmp+1}, 1, v{tmp}")
    A(f"v_mul_u32_u24 v{base}, {KH}, v{h}"); A(f"v_lshl_add_u32 v{base}, v{tmp}, 10, v{base}"); A(f"v_lshl_add_u32 v{base}, v{tmp+1}, 8, v{base}")
    A(f"v_and_b32 v{tmp+1}, 3, v1"); A(f"v_lshl_add_u32 v{base}, v{tmp+1}, 3, v{base}"); A(f"v_add_u32 v{base}, 5120, v{base}")

WOFF = [[1024, 2048], [3072, 0], [1024, 2048], [3072, 0]]

def blog(cfg, keep_m0=False):
    if not (cfg.stamps and cfg.blog and ROLE[0] == "h"): return []
    return ["s_memtime s[92:93]", "s_memrealtime s[90:91]", "s_waitcnt lgkmcnt(0)", "s_mov_b32 m0, s100", "v_writelane_b32 v200, s92, m0", "v_writelane_b32 v201, s90, m0", "s_add_u32 s100, s100, 1"]
ROLE = [""]

RING = [f"s_add_u32 s49, s49, {SLOT}", f"s_cmp_ge_u32 s49, {3*SLOT}", f"s_cselect_b32 s53, {3*SLOT}, 0", "s_sub_u32 s49, s49, s53",
        "s_add_u32 s18, s18, 1", "s_and_b32 s18, s18, 7"]

def ap_publish(cfg, A):
    T = 64
    for k in range(4): A(f"ds_read_b128 {vr(T+4*k,4)}, v42 offset:{1024*k}")
    for k in range(4):
        A(f"s_waitcnt lgkmcnt({3-k})"); A(f"buffer_store_dwordx4 {vr(T+4*k,4)}, v47, s[40:43], s9 offen sc1"); A("s_add_u32 s9, s9, 0x4000")
def ap_setup(cfg, A, half):
    A(f"v_add_u32 v42, {SLOT + 22528 + half*KH}, v63")
    A("v_lshrrev_b32 v47, 4, v1"); A("v_lshlrev_b32 v47, 12, v47"); A("v_and_b32 v44, 15, v1"); A("v_lshl_add_u32 v47, v44, 4, v47")
    A("s_lshl_b32 s9, s16, 17"); A("s_lshl_b32 s45, s17, 8"); A("s_add_u32 s9, s9, s45"); A(f"s_add_u32 s9, s9, {WS_AP + half*0x10000}")
    A("s_lshl_b32 s50, s16, 5"); A("s_add_u32 s50, s50, s17"); A("s_lshl_b32 s50, s50, 7"); A(f"s_add_u32 s50, s50, {WS_F3 + 4*half}")
    A("v_mov_b32 v45, s62"); A("v_mov_b32 v46, 0")
def f3_flag(A, n):
    A(f"s_waitcnt vmcnt({n})")
    A("s_mov_b64 exec, 1"); A("buffer_store_dword v45, v46, s[40:43], s50 offen sc1"); A("s_mov_b64 exec, -1")
def tag_load(A):
    srd(A, 40, "s6", "s7", WS_SIZE)
    A(f"s_add_u32 s10, s6, {WS_E}"); A("s_addc_u32 s11, s7, 0"); A("s_load_dword s62, s[10:11], 0")
def f3_addr(A):
    A("s_and_b32 s22, s17, 7"); A("s_sub_u32 s44, 7, s22"); A("s_cmp_lt_u32 s22, 4"); A("s_cselect_b32 s44, s22, s44"); A("s_lshl_b32 s44, s44, 9")
    A(f"s_add_u32 s52, s44, {WS_F3}"); A("s_add_u32 s44, s44, 512"); A("s_and_b32 s44, s44, 0x7ff"); A(f"s_add_u32 s51, s44, {WS_F3}")
    A("v_and_b32 v41, 15, v1"); A("v_lshlrev_b32 v41, 12, v41"); A("v_lshrrev_b32 v40, 4, v1"); A("v_lshl_add_u32 v40, v40, 7, v41")
def finish(cfg, A):
    stamp(cfg, A, 10); rstamp(cfg, A, 15); dump(cfg, A)
    if cfg.stamps:
        A("s_add_u32 s44, s44, 0x20000"); A("v_lshlrev_b32 v12, 2, v1"); A("s_mov_b64 exec, 0xffff"); A("buffer_store_dword v200, v12, s[40:43], s44 offen")
        A("s_add_u32 s44, s44, 0x20000"); A("buffer_store_dword v201, v12, s[40:43], s44 offen"); A("s_mov_b64 exec, -1")

def start_ring(cfg, L, stage, name):
    A = L.append
    stamp(cfg, A, 2)
    L += stage()
    S1 = stage(); n = 0; cut = 0
    while n < cfg.pre1:
        n += "buffer_load" in S1[cut]; cut += 1
    L += S1[:cut]
    stamp(cfg, A, 3)
    A("s_mov_b32 s48, 6")
    A(f"s_waitcnt vmcnt({cfg.pre1})"); A("s_barrier"); L += blog(cfg, True)
    L += S1[cut:]
    B = (stage() if not cfg.cdry else RING) + ["s_waitcnt vmcnt(16)", "s_barrier"] + blog(cfg) + ["s_sub_u32 s48, s48, 1", "s_cmp_lg_u32 s48, 0", f"s_cbranch_scc1 {name}"]
    B = [l.strip() for l in pad(B)]; check_backedge(B)
    A(f"{name}:"); L += B

def lds_signal(A, addr, t):
    A(f"v_mov_b32 v{t}, {addr}"); A(f"v_mov_b32 v{t+1}, 1"); A(f"ds_write_b32 v{t}, v{t+1}")
def lds_await(A, name, addr, t, two):
    A(f"v_mov_b32 v{t}, {addr}"); A("s_mov_b32 s63, 0")
    A(f"{name}:")
    A(f"ds_read_b64 {vr(t+2,2)}, v{t}" if two else f"ds_read_b32 v{t+2}, v{t}")
    A("s_add_u32 s63, s63, 1"); A("s_waitcnt lgkmcnt(0)")
    if two: A(f"v_and_b32 v{t+2}, v{t+2}, v{t+3}")
    A(f"v_cmp_eq_u32 vcc, 0, v{t+2}"); A(f"s_cbranch_vccz {name}_ok")
    A("s_sleep 1"); A(f"s_cmp_lt_u32 s63, {64*NSAFE}"); A(f"s_cbranch_scc1 {name}")
    A(f"{name}_ok:")

def late_part(cfg, L, name, vaddr, soff, half, extra=None):
    A = L.append
    bar = lambda: (A("s_barrier"), L.extend(blog(cfg)))
    bar()
    ap_publish(cfg, A)
    f3_flag(A, 0)
    stamp(cfg, A, 6)
    lds_await(A, name + "w", L_S2, 32, False)
    L.extend(blog(cfg))
    if extra: extra()
    stamp(cfg, A, 8)
    poll(A, name, vaddr, None, soff, 28, x4=True)
    lds_signal(A, L_S3 + 4*half, 32)
    stamp(cfg, A, 9)
    L.extend(blog(cfg))

def x_loader(cfg):
    L = []; A = L.append
    XO = 12
    A("v_lshrrev_b32 v40, 3, v1"); A("v_and_b32 v41, 7, v1"); A("v_lshrrev_b32 v43, 1, v40"); A("v_xor_b32 v43, v43, v41")
    A("v_lshlrev_b32 v42, 16, v40"); A("s_lshl_b32 s44, s16, 11"); A("v_add_u32 v42, s44, v42")
    A(f"v_lshl_add_u32 v{XO}, v43, 4, v42"); A(f"v_xor_b32 v{XO+1}, 64, v{XO}")
    A(f"v_add_u32 v{XO+2}, {2*(524288-1024)}, v{XO}"); A(f"v_add_u32 v{XO+3}, {3*(524288-1024)}, v{XO+1}"); A(f"v_add_u32 v{XO+1}, {524288-1024}, v{XO+1}")
    A("s_mov_b32 s49, 0")
    A("s_waitcnt lgkmcnt(0)")
    srd(A, 24, "s4", "s5", 2097152)
    def stage():
        D = ["s_lshl_b32 s52, s18, 7"]
        for t in range(4):
            D += [f"s_add_u32 m0, s49, {t*WREG}", f"s_add_u32 s51, s52, {[0, 1, 32, 33][t]*1024}"]
            D += [f"buffer_load_dwordx4 v{XO+i}, s[24:27], s51 offen" + (f" offset:{1024*i}" if i else "") + " lds" for i in range(4)]
        return D + RING
    start_ring(cfg, L, stage, "K_xloop")
    tag_load(A)
    A("s_waitcnt vmcnt(0) lgkmcnt(0)"); A("s_barrier"); L += blog(cfg)
    A("s_add_u32 s62, s62, 1")
    ap_setup(cfg, A, 0); f3_addr(A)
    A("s_barrier"); L += blog(cfg)
    late_part(cfg, L, "K_p3a", 40, "s52", 0)
    finish(cfg, A)
    A("s_endpgm")
    return L

def w_loader(cfg):
    L = []; A = L.append
    WO, VD = 12, 20
    A("s_min_u32 s44, s17, 6"); A("s_mul_i32 s20, s17, 5"); A("s_add_u32 s20, s20, s44")
    A("s_cmp_lt_u32 s17, 6"); A("s_cselect_b32 s21, 6, 5")
    A("s_sub_u32 s47, s46, 1")
    A("v_lshrrev_b32 v44, 4, v1"); A("v_and_b32 v45, 15, v1")
    A("s_lshl_b32 s44, s47, 3"); A("v_add_u32 v42, s44, v44"); A("v_mul_u32_u24 v42, 2752, v42")
    A("v_and_b32 v43, 1, v45"); A("v_lshl_add_u32 v42, v43, 4, v42")
    A("v_lshrrev_b32 v45, 1, v45"); A(f"v_mov_b32 v46, {OOB}"); A("v_lshlrev_b32 v44, 1, v44"); A("v_xor_b32 v44, v44, v45")
    for mat in range(2):
        if mat: A("v_xor_b32 v44, 1, v44")
        A("v_cmp_gt_u32 vcc, s21, v44")
        A("v_add_u32 v43, s20, v44"); A("v_lshl_add_u32 v43, v43, 5, v42"); A("v_cndmask_b32 v43, v46, v43, vcc")
        for q in range(4):
            A(f"v_add_u32 v{WO+2*q+mat}, {q*44032 + 4096 - WOFF[q][mat]}, v43")
    A(f"s_mul_i32 s49, s47, {KH}")
    A("s_waitcnt lgkmcnt(0)")
    A("s_sub_u32 s32, s12, 4096"); A("s_subb_u32 s33, s13, 0"); A(f"s_mov_b32 s34, {1409024+4096}"); A("s_mov_b32 s35, 0x20000")
    A("s_sub_u32 s36, s14, 4096"); A("s_subb_u32 s37, s15, 0"); A(f"s_mov_b32 s38, {1409024+4096}"); A("s_mov_b32 s39, 0x20000")
    def stage():
        D = ["s_mul_i32 s51, s18, 176128", "s_add_u32 s52, s51, 11008"]
        order = [(q, g) for q in range(4) for g in range(2)] if cfg.worder else [(q, g) for g in range(2) for q in range(4)]
        m0 = None
        for q, g in order:
            for mat in range(2):
                want = g*WREG + 5120 + q*2048 + mat*1024 - WOFF[q][mat]
                if want != m0: D.append(f"s_add_u32 m0, s49, {want}"); m0 = want
                off = f" offset:{WOFF[q][mat]}" if WOFF[q][mat] else ""
                D.append(f"buffer_load_dwordx4 v{WO+2*q+mat}, s[{32+4*mat}:{35+4*mat}], s{51+g} offen{off} lds")
        return D + RING
    start_ring(cfg, L, stage, "K_wloop")
    A("s_and_b32 s22, s17, 7")
    A("v_lshrrev_b32 v40, 3, v1"); A("v_and_b32 v41, 7, v1")
    A("v_lshlrev_b32 v43, 1, v40"); A("v_and_b32 v43, 4, v43"); A("v_xor_b32 v43, v43, v41"); A("v_lshlrev_b32 v43, 4, v43"); A("v_lshl_add_u32 v43, v40, 10, v43")
    A("s_lshl_b32 s45, s22, 7"); A(f"v_add_u32 v{VD}, s45, v43"); A(f"v_add_u32 v{VD+1}, {8192-1024}, v{VD}")
    A("s_mul_i32 s60, s47, 704512"); A(f"s_mul_i32 s55, s47, {KH}")
    srd(A, 96, "s56", "s57", 1409024)
    if cfg.stamps: srd(A, 40, "s6", "s7", WS_SIZE)
    cnt = [0]; done = [0]; queue = [("s7", i) for i in range(16)]
    def wrange(upto):
        while done[0] < upto:
            st = done[0]
            slot, pos, end = (2, st, 13) if st < 13 else (0, st-13, 26) if st < 26 else (1, st-26, 37) if st < 37 else (2, st-37, 43)
            n = min(end, upto) - st
            name = f"K_wp{cnt[0]}"; cnt[0] += 1
            A(f"s_add_u32 s44, s55, {slot*SLOT + pos*2048}"); A(f"s_mov_b32 s48, {n}")
            A(f"{name}:")
            A("s_mov_b32 m0, s44"); A("s_add_u32 s44, s44, 2048")
            A(f"buffer_load_dwordx4 v{VD}, s[96:99], s60 offen lds"); A(f"buffer_load_dwordx4 v{VD+1}, s[96:99], s60 offen offset:1024 lds")
            A("s_add_u32 s60, s60, 16384"); A("s_sub_u32 s48, s48, 1"); A("s_cmp_lg_u32 s48, 0"); A(f"s_cbranch_scc1 {name}")
            for k in range(st, st+n): queue.extend([("w", k, 0), ("w", k, 1)])
            done[0] += n
    after = lambda item: len(queue) - 1 - queue.index(item)
    nb = [int(x) for x in cfg.nb.split(",")]
    assert 6 <= nb[0] <= 13 and nb[1] <= 26 and 26 <= nb[2] <= 37
    wrange(nb[0])
    A(f"s_waitcnt vmcnt({after(('s7', 15))})"); A("s_barrier")
    wrange(nb[1])
    A(f"s_waitcnt vmcnt({after(('w', 5, 1))})"); A("s_barrier")
    wrange(nb[2])
    A(f"s_waitcnt vmcnt({after(('w', 25, 1))})"); A("s_barrier")
    wrange(43)
    stamp(cfg, A, 6)
    A("s_lshl_b32 s44, s47, 2"); A(f"s_add_u32 s44, s44, {L_SW}")
    A("s_waitcnt vmcnt(0)")
    lds_signal(A, "s44", 32)
    finish(cfg, A)
    A("s_endpgm")
    return L

def helper(cfg):
    L = []; A = L.append
    T, C3, SW, FR, SA = 28, 26, 12, 64, 112
    bar = lambda: (A("s_barrier"), L.extend(blog(cfg)))
    A("s_waitcnt lgkmcnt(0)")
    tag_load(A)
    srd(A, 96, "s56", "s57", 1409024)
    A("v_and_b32 v42, 1, v1"); A("v_lshlrev_b32 v42, 7, v42"); A("s_lshl_b32 s54, s16, 12"); A(f"s_add_u32 s54, s54, {WS_FF}")
    if cfg.codepf:
        A("s_getpc_b64 s[28:29]"); A("K_pc:"); A("s_sub_u32 s28, s28, K_pc-K_start"); A("s_subb_u32 s29, s29, 0")
        A("s_mov_b32 s30, K_stop-K_start"); A("s_mov_b32 s31, 0x20000")
        A("s_and_b32 s44, s17, 3"); A("s_mul_i32 s44, s44, 5120")
        A("v_min_u32 v43, 39, v1"); A("v_lshlrev_b32 v43, 7, v43")
        A(f"buffer_load_dword v{T+1}, v43, s[28:31], s44 offen")
    A(f"buffer_load_dword v{T}, v42, s[40:43], s54 offen sc1")
    A("v_and_b32 v3, 31, v1"); A("v_lshrrev_b32 v4, 5, v1")
    w_frag_base(A, 4, 42, 44, 45)
    A("s_lshl_b32 s44, s8, 12"); A("v_add_u32 v45, s44, v45")
    for u in range(6):
        A(f"v_xor_b32 v43, {u}, v44"); A(f"v_lshl_add_u32 v{SW+u}, v43, 5, v45")
    for r in range(4): A(f"v_mov_b32 v{T+4+r}, 0")
    A(f"v_add_u32 v42, {L_ZERO}, v63"); A(f"ds_write_b128 v42, {vr(T+4,4)}")
    A("s_lshr_b32 s44, s2, 3"); A("s_lshl_b32 s44, s44, 2")
    A(f"v_lshrrev_b32 v{C3}, 2, v1"); A(f"v_mul_u32_u24 v{C3}, 688, v{C3}"); A("v_and_b32 v43, 3, v1"); A(f"v_add3_u32 v{C3}, v{C3}, v43, s44")
    A(f"v_lshlrev_b32 v{C3}, 10, v{C3}"); A(f"v_add_u32 v{C3}, 384, v{C3}")
    A("v_cmp_gt_u32 vcc, 8, v1"); A(f"v_mov_b32 v43, {OOB}"); A(f"v_cndmask_b32 v{C3}, v43, v{C3}, vcc")
    def c3(it):
        if cfg.c3: A(f"s_mov_b32 s44, {131072*it}"); A(f"buffer_load_dword v{T+2}, v{C3}, s[96:99], s44 offen")
    def wwarm():
        A("s_mul_i32 s44, s2, 5504"); A("v_min_u32 v43, 42, v1"); A("v_lshlrev_b32 v43, 7, v43")
        A(f"buffer_load_dword v{T+3}, v43, s[96:99], s44 offen")
    if cfg.wwarm == 1: wwarm()
    if cfg.wpf:
        srd(A, 32, "s12", "s13", 1409024); srd(A, 36, "s14", "s15", 1409024)
        if cfg.wpfd: A("s_waitcnt vmcnt(0)")
        A("s_mul_i32 s44, s2, 4128"); A("s_and_b32 s44, s44, 0xffffff80"); A(f"s_add_u32 s44, s44, {128*2752}")
        A("v_min_u32 v43, 33, v1"); A("v_lshlrev_b32 v43, 7, v43")
        A(f"buffer_load_dword v{T+9}, v43, s[32:35], s44 offen"); A(f"buffer_load_dword v{T+10}, v43, s[36:39], s44 offen")
    A("s_waitcnt lgkmcnt(0)"); A("s_add_u32 s62, s62, 1")
    ap_setup(cfg, A, 1)
    if cfg.tlb: A(f"buffer_load_dword v{T+8}, v46, s[40:43], s9 offen sc1")
    stamp(cfg, A, 3)
    bar()
    for u in range(6):
        for par in range(2):
            f = FR + 8*u + 4*par
            A(f"ds_read_b64_tr_b16 {vr(f,2)}, v{SW+u} offset:{par*2048}"); A(f"ds_read_b64_tr_b16 {vr(f+2,2)}, v{SW+u} offset:{par*2048+WREG}")
    if cfg.wwarm == 2: wwarm()
    def colsum(u):
        for r in range(8):
            A(f"v_lshlrev_b32 v{SA+8}, 16, v{FR+8*u+r}"); A(f"v_and_b32 v{SA+9}, 0xffff0000, v{FR+8*u+r}")
            if r == 0: A(f"v_add_f32 v{SA+u}, v{SA+8}, v{SA+9}")
            else: A(f"v_add_f32 v{SA+u}, v{SA+u}, v{SA+8}"); A(f"v_add_f32 v{SA+u}, v{SA+u}, v{SA+9}")
    A("s_waitcnt lgkmcnt(0)")
    for u in range(3): colsum(u)
    bar()
    for u in range(3, 6): colsum(u)
    for j in range(3): A(f"v_permlane32_swap_b32 v{SA+j}, v{SA+3+j}")
    for j in range(3): A(f"v_add_f32 v{SA+j}, v{SA+j}, v{SA+3+j}")
    A(f"v_mov_b32 v{SA+3}, s62")
    A("s_lshl_b32 s44, s16, 4"); A("s_add_u32 s44, s44, s17"); A("s_lshl_b32 s44, s44, 10"); A(f"s_add_u32 s44, s44, {WS_CS}")
    A(f"buffer_store_dwordx4 {vr(SA,4)}, v63, s[40:43], s44 offen sc1")
    c3(0)
    RSV, CSV = 48, 128
    A("s_lshl_b32 s48, s16, 11"); A(f"s_add_u32 s48, s48, {WS_RS}")
    A("s_lshl_b32 s49, s17, 10"); A(f"s_add_u32 s49, s49, {WS_CS}")
    def gather(a=0, n=18):
        for k in range(a, a+n):
            if k < 2: A(f"buffer_load_dwordx4 {vr(RSV+4*k,4)}, v63, s[40:43], s48 offen offset:{1024*k} sc1")
            else:
                A(f"s_add_u32 s44, s49, {16384*(k-2)}"); A(f"buffer_load_dwordx4 {vr(CSV+4*(k-2),4)}, v63, s[40:43], s44 offen sc1")
    ga = [int(x) for x in cfg.gat.split(",")]; assert sum(ga) == 18
    bar(); c3(1); c3(2)
    bar(); gather(0, ga[0]); c3(3)
    bar(); gather(ga[0], ga[1]); c3(4)
    bar(); gather(ga[0]+ga[1], ga[2]); c3(5)
    bar()
    A("s_mov_b32 s63, 0")
    A("K_chk:")
    A("s_waitcnt vmcnt(0)")
    A(f"v_xor_b32 v56, s62, v{RSV+2}"); A(f"v_xor_b32 v57, s62, v{RSV+6}"); A("v_or_b32 v56, v56, v57")
    for k in range(16): A(f"v_xor_b32 v57, s62, v{CSV+4*k+3}"); A("v_or_b32 v56, v56, v57")
    A("v_cmp_ne_u32 vcc, 0, v56"); A("s_cbranch_vccz K_cok")
    A("s_sleep 4"); gather(); A("s_add_u32 s63, s63, 1"); A(f"s_cmp_lt_u32 s63, {NSAFE}"); A("s_cbranch_scc1 K_chk")
    A("s_waitcnt vmcnt(0)")
    A("K_cok:")
    A("v_lshlrev_b32 v60, 3, v1"); A(f"v_add_u32 v60, {L_MB}, v60"); A("v_lshlrev_b32 v61, 2, v1"); A(f"v_add_u32 v61, {L_RR}, v61")
    for k in range(2):
        m = RSV + 4*k; a = 56 + 2*k
        A(f"v_cvt_pk_bf16_f32 v{a}, -v{m}, -v{m}"); A(f"v_and_b32 v{a+1}, 0xffff0000, v{a}"); A(f"v_sub_f32 v{m}, -v{m}, v{a+1}")
        A(f"v_cvt_pk_bf16_f32 v{a}, v{a+1}, v{m}"); A(f"v_lshrrev_b32 v{a+1}, 16, v{a+1}")
        A(f"ds_write_b64 v60, {vr(a,2)} offset:{512*k}"); A(f"ds_write_b32 v61, v{m+1} offset:{256*k}")
    for k in range(1, 6):
        for j in range(3): A(f"v_add_f32 v{CSV+j}, v{CSV+j}, v{CSV+4*k+j}")
    bar()
    for k in range(6, 16):
        for j in range(3): A(f"v_add_f32 v{CSV+j}, v{CSV+j}, v{CSV+4*k+j}")
    A("v_mul_u32_u24 v60, 768, v4"); A("v_lshl_add_u32 v60, v3, 3, v60"); A(f"v_add_u32 v60, {L_CSF}, v60")
    for j in range(3):
        a = CSV + 4 + 2*j
        A(f"v_cvt_pk_bf16_f32 v{a}, v{CSV+j}, v{CSV+j}"); A(f"v_and_b32 v{a+1}, 0xffff0000, v{a}"); A(f"v_sub_f32 v{a+1}, v{CSV+j}, v{a+1}")
        A(f"v_cvt_pk_bf16_f32 v{a+1}, v{a+1}, v{a+1}"); A(f"ds_write_b64 v60, {vr(a,2)} offset:{256*j}")
    f3_addr(A)
    A("s_waitcnt lgkmcnt(0)"); bar()
    def safe():
        A("v_and_b32 v44, 3, v1"); A("v_lshlrev_b32 v44, 2, v44"); A("s_lshl_b32 s44, s17, 4"); A("v_add_u32 v44, s44, v44"); A(f"s_add_u32 s44, s54, {WS_FS - WS_FF}")
        A("s_mov_b64 exec, 15"); A("buffer_store_dword v45, v44, s[40:43], s44 offen sc1"); A("s_mov_b64 exec, -1")
    late_part(cfg, L, "K_p3b", 41, "s51", 1, safe)
    finish(cfg, A)
    A("s_cmp_eq_u32 s2, 0"); A("s_cbranch_scc0 K_end")
    for q in range(4):
        A(f"s_mov_b32 s50, {WS_F3 + 512*q}")
        poll(A, f"K_pe{q}", 40, None, "s50", T, x4=True)
    A(f"s_mov_b32 s50, {WS_E}"); A("s_mov_b64 exec, 1"); A("buffer_store_dword v45, v46, s[40:43], s50 offen sc1")
    A("s_endpgm")
    return L

def loader(cfg):
    L = []
    if cfg.stamps: L += ["s_mov_b32 s100, 0", "v_mov_b32 v200, 0", "v_mov_b32 v201, 0"]
    L += ["s_cmp_eq_u32 s46, 0", "s_cbranch_scc1 K_xl", "s_cmp_eq_u32 s46, 3", "s_cbranch_scc1 K_help"]
    ROLE[0] = "w"; L += w_loader(cfg)
    ROLE[0] = "x"; L += ["K_xl:"] + x_loader(cfg)
    ROLE[0] = "h"; L += ["K_help:"] + helper(cfg)
    return L

def wave_sum(A, regs, t):
    for ctl in ("quad_perm:[1,0,3,2]", "quad_perm:[2,3,0,1]", "row_half_mirror", "row_mirror"):
        for r in regs: A(f"v_add_f32_dpp v{r}, v{r}, v{r} {ctl} row_mask:0xf bank_mask:0xf")
    for sw in ("v_permlane16_swap_b32", "v_permlane32_swap_b32"):
        for r, u in zip(regs, t): A(f"v_mov_b32 v{u}, v{r}")
        for r, u in zip(regs, t): A(f"{sw} v{r}, v{u}")
        for r, u in zip(regs, t): A(f"v_add_f32 v{r}, v{r}, v{u}")

def compute(cfg):
    L = []; A = L.append
    AX, AW, AY = 48, 52, 56
    FB = [64, 96]; ACC = 128; WR, WI = 32, 40
    XP, VO = 240, 248
    RW = 76
    A("s_lshr_b32 s48, s17, 2"); tile_c(A, "s47", "s48")
    A("s_and_b32 s44, s17, 3"); A("s_lshl_b32 s44, s44, 3"); A("s_lshl_b32 s45, s46, 1"); A("s_add_u32 s44, s44, s45"); A("s_lshl_b32 s44, s44, 6")
    A("s_add_u32 s50, s47, s44"); A("s_lshl_b32 s50, s50, 10"); A("s_add_u32 s51, s50, 65536")
    A("s_waitcnt lgkmcnt(0)")
    srd(A, 24, "s4", "s5", 2097152 if not cfg.norow else 0)
    A(f"buffer_load_dwordx4 {vr(RW,4)}, v63, s[24:27], s50 offen"); A(f"buffer_load_dwordx4 {vr(RW+4,4)}, v63, s[24:27], s51 offen")
    stamp(cfg, A, 2)
    A(f"s_add_u32 s28, s6, {WS_E}"); A("s_addc_u32 s29, s7, 0"); A("s_load_dword s62, s[28:29], 0")
    A("s_and_b32 s22, s17, 7"); A("s_lshr_b32 s9, s17, 3"); A("s_lshl_b32 s44, s16, 1"); A("s_add_u32 s23, s9, s44")
    A("s_lshr_b32 s48, s46, 1"); A("s_and_b32 s49, s46, 1")
    A("s_lshl_b32 s52, s49, 5"); A("s_add_u32 s52, s52, s23")
    A("s_lshl_b32 s44, s22, 6"); A("s_lshl_b32 s45, s48, 5"); A("s_add_u32 s53, s44, s45")
    A("v_lshrrev_b32 v7, 2, v1"); A("v_lshrrev_b32 v8, 2, v7"); A("v_xor_b32 v8, v8, v1"); A("v_and_b32 v8, 3, v8")
    A("v_lshlrev_b32 v7, 16, v7"); A("v_lshl_add_u32 v7, v8, 4, v7")
    A("s_lshl_b32 s44, s52, 10"); A("s_lshl_b32 s45, s53, 1"); A("s_add_u32 s44, s44, s45"); A(f"v_add_u32 v{VO}, s44, v7")
    A(f"v_add_u32 v{VO+1}, 0x100000, v{VO}")
    A(f"buffer_load_dwordx4 {vr(RW+8,4)}, v{VO}, s[24:27], 0 offen"); A(f"buffer_load_dwordx4 {vr(RW+12,4)}, v{VO+1}, s[24:27], 0 offen")
    srd(A, 40, "s6", "s7", WS_SIZE); srd(A, 32, "s58", "s59", 2097152)
    A(f"s_mov_b32 s61, {SLOT}")
    A("s_min_u32 s44, s17, 6"); A("s_mul_i32 s20, s17, 5"); A("s_add_u32 s20, s20, s44")
    A("s_cmp_lt_u32 s17, 6"); A("s_cselect_b32 s21, 6, 5")
    tile_c(A, "s47", "s46")
    A("s_mul_i32 s101, s47, 86"); A("s_add_u32 s101, s101, s20"); A("s_mul_i32 s44, s49, 3"); A("s_add_u32 s101, s101, s44"); A("s_lshl_b32 s101, s101, 10")
    nt = 0
    if cfg.tlb:
        A("s_mov_b64 exec, 1"); A(f"buffer_load_dword v253, v{VO}, s[32:35], 0 offen sc1"); A("buffer_load_dword v255, v63, s[40:43], s101 offen sc1")
        A("s_mov_b32 exec_lo, 0"); A("s_mov_b32 exec_hi, 0x80000000"); A(f"buffer_load_dword v254, v{VO+1}, s[32:35], 0 offen sc1"); A("s_mov_b64 exec, -1")
        nt = 3
    A("v_and_b32 v3, 31, v1"); A("v_lshrrev_b32 v4, 5, v1")
    A("v_lshrrev_b32 v5, 1, v3"); A("v_and_b32 v5, 7, v5"); A("v_xor_b32 v5, v5, v4"); A("v_lshlrev_b32 v5, 4, v5")
    A("v_lshl_add_u32 v6, v3, 7, v5"); A("s_mul_i32 s54, s46, 13312"); A("s_xor_b32 s44, s46, 1"); A("s_mul_i32 s44, s44, 13312"); A("v_add_u32 v5, s44, v6"); A("v_add_u32 v6, s54, v6")
    w_frag_base(A, 4, 7, 9, 10)
    for q in range(4): A(f"v_xor_b32 v{AX+q}, {32*q}, v6"); A(f"v_xor_b32 v{AY+q}, {32*q}, v5")
    for u in range(3):
        A("s_mul_i32 s44, s49, 3"); A(f"s_add_u32 s44, s44, {u}"); A("v_xor_b32 v12, s44, v9"); A(f"v_lshl_add_u32 v{AW+u}, v12, 5, v10")
    for r in range(112): A(f"v_mov_b32 v{ACC+r}, 0")
    A("v_cvt_f32_u32 v12, v3"); A(f"v_mul_f32 v12, {f32(-1/32)}, v12")
    A("v_lshlrev_b32 v13, 2, v4"); A("v_cvt_f32_u32 v13, v13"); A("v_mul_f32 v13, v12, v13")
    for kap in range(2):
        for n in range(4):
            for b in range(2):
                idx = 2*n + b; j = 16*kap + 8*(idx//4) + idx % 4
                A(f"v_fmamk_f32 v{14+b}, v12, {f32(j)}, v13")
                A(f"v_cos_f32 v{16+b}, v{14+b}"); A(f"v_sin_f32 v{18+b}, v{14+b}")
            A(f"v_cvt_pk_bf16_f32 v{WR+4*kap+n}, v16, v17"); A(f"v_cvt_pk_bf16_f32 v{WI+4*kap+n}, v18, v19")
    DS = [8, 16]
    A("v_and_b32 v24, 15, v1"); A("s_lshl_b32 s44, s17, 4"); A("v_add_u32 v24, s44, v24")
    A("v_and_b32 v25, 16, v1"); A("v_or_b32 v26, v24, v25"); A("v_cmp_eq_u32 vcc, 0, v26"); A("v_mov_b32 v26, 256"); A("v_cndmask_b32 v24, v24, v26, vcc")
    A("v_cvt_f32_u32 v24, v24"); A(f"v_mul_f32 v24, {f32(1/512)}, v24"); A("v_cvt_f32_u32 v25, v25"); A(f"v_mul_f32 v25, {f32(1/64)}, v25")
    A("s_lshl_b32 s44, s18, 6"); A("v_lshl_add_u32 v26, v4, 3, s44"); A("v_cvt_f32_u32 v26, v26"); A("v_fma_f32 v26, v24, v26, v25")
    for i in range(8):
        A(f"v_fmamk_f32 v{DS[0]+i}, v24, {f32(i)}, v26"); A(f"v_fmamk_f32 v{DS[1]+i}, v24, {f32(i-16)}, v26")
    A("v_mul_f32 v27, 16.0, v24".replace("16.0", f32(16.0)))
    for i in range(16): A(f"v_cos_f32 v{DS[0]+i}, v{DS[0]+i}")
    A("v_cos_f32 v27, v27"); A("v_add_f32 v27, v27, v27")
    for n in range(4): A(f"v_cvt_pk_bf16_f32 v{FB[0]+8+n}, v{DS[0]+2*n}, v{DS[0]+2*n+1}")
    stamp(cfg, A, 3)
    A(f"s_waitcnt vmcnt({2 + nt})")
    stamp(cfg, A, 4)
    U = [96, 104]; S = [112, 113]; Q = [114, 115]; TT = [116, 117]
    for k in range(2):
        for r in range(4):
            A(f"v_lshlrev_b32 v{U[k]+2*r}, 16, v{RW+4*k+r}"); A(f"v_and_b32 v{U[k]+2*r+1}, 0xffff0000, v{RW+4*k+r}")
    for k in range(2): A(f"v_add_f32 v{S[k]}, v{U[k]}, v{U[k]+1}")
    for r in range(2, 8):
        for k in range(2): A(f"v_add_f32 v{S[k]}, v{S[k]}, v{U[k]+r}")
    wave_sum(A, S, TT)
    for k in range(2): A(f"v_mul_f32 v{S[k]}, {f32(1/512)}, v{S[k]}")
    for r in range(8):
        for k in range(2): A(f"v_sub_f32 v{U[k]+r}, v{U[k]+r}, v{S[k]}")
    for k in range(2): A(f"v_mul_f32 v{Q[k]}, v{U[k]}, v{U[k]}")
    for r in range(1, 8):
        for k in range(2): A(f"v_fmac_f32 v{Q[k]}, v{U[k]+r}, v{U[k]+r}")
    wave_sum(A, Q, TT)
    A(f"v_mov_b32 v118, {f32(1e-5)}")
    for k in range(2): A(f"v_fmamk_f32 v{Q[k]}, v{Q[k]}, {f32(1/512)}, v118")
    for k in range(2): A(f"v_rsq_f32 v{Q[k]}, v{Q[k]}")
    A("v_cmp_eq_u32 vcc, 0, v1")
    A("s_lshl_b32 s44, s16, 7"); A("s_lshl_b32 s45, s17, 3"); A("s_add_u32 s44, s44, s45"); A("s_lshl_b32 s45, s46, 1"); A("s_add_u32 s44, s44, s45")
    A("s_lshl_b32 s44, s44, 4"); A(f"s_add_u32 s44, s44, {WS_RS}")
    A("s_waitcnt lgkmcnt(0)"); A("s_add_u32 s62, s62, 1")
    A(f"v_cndmask_b32 v120, v{S[1]}, v{S[0]}, vcc"); A(f"v_cndmask_b32 v121, v{Q[1]}, v{Q[0]}, vcc"); A("v_mov_b32 v122, s62"); A("v_mov_b32 v123, 0")
    A("s_mov_b64 exec, 3"); A("buffer_store_dwordx4 v[120:123], v63, s[40:43], s44 offen sc1"); A("s_mov_b64 exec, -1")
    stamp(cfg, A, 5)
    A(f"s_add_u32 s44, s54, {2*SLOT}"); A("v_add_u32 v96, s44, v63")
    A("v_lshrrev_b32 v97, 2, v3"); A("v_and_b32 v97, 3, v97"); A("v_lshlrev_b32 v97, 4, v97")
    A("v_lshl_add_u32 v97, v3, 6, v97"); A(f"v_lshl_add_u32 v{VO+2}, v4, 3, v97"); A(f"v_add_u32 v97, s44, v{VO+2}")
    A(f"s_waitcnt vmcnt({1 + nt})")
    A(f"ds_write_b128 v96, {vr(RW+8,4)}"); A(f"ds_write_b128 v96, {vr(RW+12,4)} offset:1024")
    for jj in range(4): A(f"v_xor_b32 v{98+jj}, {16*jj}, v97")
    A("s_waitcnt lgkmcnt(0)")
    for jj in range(4): A(f"ds_read_b64 {vr(XP+2*jj,2)}, v{98+jj}")
    A("s_lshl_b32 s60, s16, 12"); A(f"s_add_u32 s60, s60, {WS_FF}")
    A("s_lshl_b32 s44, s17, 4"); A("s_lshl_b32 s45, s46, 2"); A("s_add_u32 s44, s44, s45")
    A(f"v_mov_b32 v{VO+3}, s44"); A(f"v_mov_b32 v{VO+4}, s62")
    A("s_lshl_b32 s44, s46, 8"); A(f"s_add_u32 s44, s44, {L_MB}"); A("v_lshl_add_u32 v28, v3, 3, s44"); A(f"v_mov_b32 v29, {L_ZERO}")
    A("v_cmp_eq_u32 vcc, 0, v4"); A("v_cndmask_b32 v28, v29, v28, vcc"); A("v_xor_b32 v62, 256, v28")
    A("s_mul_i32 s44, s49, 768"); A(f"s_add_u32 s44, s44, {L_CSF}"); A("v_lshl_add_u32 v29, v3, 3, s44")
    A("s_lshl_b32 s44, s46, 7"); A(f"s_add_u32 s44, s44, {L_RR}"); A("v_lshl_add_u32 v30, v4, 4, s44")
    A("s_lshl_b32 s44, s49, 1"); A("s_add_u32 s44, s44, s9"); A("s_lshl_b32 s44, s44, 7"); A(f"s_add_u32 s44, s44, {L_RR}"); A("v_lshl_add_u32 v31, v3, 2, s44")
    def dstep(q, buf):
        cur, prv = DS[q % 2], DS[(q+1) % 2]
        G = []
        if cfg.nodg: return G
        for n in range(4):
            G += [f"v_fma_f32 v{prv+2*n}, v27, v{cur+2*n}, -v{prv+2*n}", f"v_fma_f32 v{prv+2*n+1}, v27, v{cur+2*n+1}, -v{prv+2*n+1}"]
        return G + [f"v_cvt_pk_bf16_f32 v{buf+8+n}, v{prv+2*n}, v{prv+2*n+1}" for n in range(4)]
    if cfg.prio: A("s_setprio 1")
    def reads(buf, q):
        R = [f"ds_read_b128 {vr(buf,4)}, v{AX+q}", f"ds_read_b128 {vr(buf+4,4)}, v{AY+q}"]
        for u in range(3):
            R.append(f"ds_read_b64_tr_b16 {vr(buf+12+4*u,2)}, v{AW+u} offset:{q*2048}")
            R.append(f"ds_read_b64_tr_b16 {vr(buf+14+4*u,2)}, v{AW+u} offset:{q*2048+WREG}")
        return R
    A("s_mov_b32 s50, 0"); A("s_mov_b32 s51, 7")
    stamp(cfg, A, 6)
    A("s_waitcnt lgkmcnt(0)"); A("s_barrier")
    stamp(cfg, A, 7)
    if cfg.stamps: A("s_waitcnt lgkmcnt(0)")
    L += reads(FB[0], 0)
    MF, T2 = 176, 232
    G = [f"v_lshl_add_u32 v{T2}, v3, 6, s52", f"v_cvt_f32_u32 v{T2}, v{T2}", f"v_mul_f32 v{T2}, s47, v{T2}",
         f"v_lshlrev_b32 v{T2+1}, 1, v4", f"v_cvt_f32_u32 v{T2+1}, v{T2+1}", f"v_mul_f32 v{T2+1}, v{T2}, v{T2+1}"]
    for k in range(8):
        for w4 in range(4):
            c = 4*k + [0, 1, 32, 33][w4]; a = T2 + 2 + 3*(w4 % 2)
            G += [f"v_fmamk_f32 v{a}, v{T2}, {f32(c)}, v{T2+1}", f"v_cos_f32 v{a+1}, v{a}", f"v_sin_f32 v{a+2}, v{a}"]
            if w4 % 2 == 1:
                G += [f"v_cvt_pk_bf16_f32 v{MF+4*k+w4-1}, v{T2+3}, v{T2+4}", f"v_cvt_pk_bf16_f32 v{MF+4*k+w4}, v{T2+6}, v{T2+7}"]
    def GPRE(A):
        for _ in range(min(cfg.gpre, len(G))): A(G.pop(0))
    add = lambda r: f"v_add_u32 v{r}, s44, v{r}"
    cost = lambda it: len(it) if isinstance(it, list) else 1
    ZB, P, Q2, T, CF, MBF, RR = 8, 96, 112, 16, 64, 80, 80
    Z = ACC + 96
    def stage_code(last, uh=0):
        B = []; C = B.append
        ctl = ["s_add_u32 s50, s50, 1", ["s_cmp_eq_u32 s50, 3", f"s_cselect_b32 s44, {(-2*SLOT) & 0xffffffff}, s61", "s_cselect_b32 s50, 0, s50"]]
        others = {0: dstep(0, FB[1]) + ctl + [add(AX+0), add(AY+0)], 1: dstep(1, FB[0]) + [add(AX+1), add(AY+1)], 2: dstep(2, FB[1]) + [add(AX+2), add(AY+2)],
                  3: dstep(3, FB[0]) + [add(AX+3), add(AY+3), ["s_sub_u32 s51, s51, 1", "s_cmp_lg_u32 s51, 0"]]}
        if last:
            others = {0: dstep(0, FB[1]), 1: dstep(1, FB[0]), 2: dstep(2, FB[1]), 3: [f"v_mov_b32 v{MBF+r}, 0" for r in (2, 3, 6, 7)]}
        for q in range(4):
            cur, nxt = FB[q % 2], FB[(q+1) % 2]
            C("s_waitcnt lgkmcnt(0)")
            if q == 3: C("s_barrier")
            M = [f"v_mfma_f32_32x32x16_bf16 {vr(ACC+96,16)}, {vr(cur+4*uh,4)}, {vr(cur+8,4)}, {vr(ACC+96,16)}"]
            order = [(u, t) for u in range(3) for t in range(2)] if cfg.morder else [(u, t) for t in range(2) for u in range(3)]
            M += [f"v_mfma_f32_32x32x16_bf16 {vr(ACC+16*(3*t+u),16)}, {vr(cur+12+4*u,4)}, {vr(cur+4*t,4)}, {vr(ACC+16*(3*t+u),16)}" for u, t in order]
            R = reads(nxt, (q+1) % 4); O = list(others[q])
            if last and q == 3:
                R = [f"ds_read_b64 {vr(MBF+4*t,2)}, v{[28, 62][t]}" for t in range(2)] + [f"ds_read_b64 {vr(CF+4*u,2)}, v29 offset:{256*u}" for u in range(3)]
                R += [f"ds_read_b128 {vr(8+4*jj,4)}, v30 offset:{32*jj}" for jj in range(4)] + ["ds_read_b32 v2, v31"]
            late = [(min(4 + 2*u, len(R)), add(AW+u)) for u in range(3)] if q == 2 and not last else []
            nread = 0
            for g, m in enumerate(M):
                C(m); budget = cfg.budget - (1 if g == 6 else 0)
                for _ in range(cfg.rpg):
                    if R: C(R.pop(0)); nread += 1; budget -= 1
                while late and late[0][0] <= nread and (budget >= 1 or g == 6):
                    C(late.pop(0)[1]); budget -= 1
                while O and (cost(O[0]) <= budget or g == 6):
                    it = O.pop(0); budget -= cost(it); B.extend(it if isinstance(it, list) else [it])
            assert not R and not O and not late
        return B
    B = stage_code(False) + ["s_cbranch_scc1 K_cloop"]
    B = [l.strip() for l in pad(B)]; check_backedge(B)
    A(".p2align 3"); A("K_cloop:"); L += B
    L += stage_code(True)
    stamp(cfg, A, 8)
    A("s_waitcnt lgkmcnt(0)")
    HT = [96, 100, 104, 108, 112, 116]
    def glu(u):
        a = ACC + 16*u; t = HT[u]
        G = [f"v_mul_f32 v{a+r}, v{a+r}, v{a+8+r}" for r in range(8)]
        G += [f"v_cvt_pk_bf16_f32 v{t+n}, v{a+2*n}, v{a+2*n+1}" for n in range(4)]
        so = "s101" if u < 3 else "s100"
        if u % 3 == 2: G += [f"s_add_u32 {so}, {so}, s45"]
        return G + [f"buffer_store_dwordx4 {vr(t,4)}, v63, s[40:43], {so} offen offset:{1024*(u % 3)} sc1"]
    ZS = [f"v_mul_f32 v{Z+r}, v{Z+r}, v{8+r}" for r in range(16)]
    A("s_mul_i32 s44, s49, 176128"); A("s_sub_u32 s100, s101, s44"); A("s_add_u32 s100, s100, 88064"); A("s_lshl_b32 s44, s49, 3"); A("s_add_u32 s44, s44, s21"); A("s_cmp_eq_u32 s44, 13"); A(f"s_cselect_b32 s45, {OOB}, 0")
    for u in range(6):
        A(f"v_mfma_f32_32x32x16_bf16 {vr(ACC+16*u,16)}, {vr(CF+4*(u % 3),4)}, {vr(MBF+4*(u//3),4)}, {vr(ACC+16*u,16)}")
        if u < 3: L += ZS[:6]; ZS = ZS[6:]
        else: L += glu(u - 3)[:6] if False else []
    for u in range(6): L += glu(u)
    stamp(cfg, A, 9)
    for n in range(8): A(f"v_cvt_pk_bf16_f32 v{64+n}, v{Z+2*n}, v{Z+2*n+1}")
    P, Q2 = 208, 224
    A(f"v_mfma_f32_32x32x16_bf16 {vr(P,16)}, {vr(WR,4)}, v[64:67], 0")
    A(f"v_mfma_f32_32x32x16_bf16 {vr(Q2,16)}, {vr(WI,4)}, v[64:67], 0")
    A(f"v_mfma_f32_32x32x16_bf16 {vr(P,16)}, {vr(WR+4,4)}, v[68:71], {vr(P,16)}")
    A(f"v_mfma_f32_32x32x16_bf16 {vr(Q2,16)}, {vr(WI+4,4)}, v[68:71], {vr(Q2,16)}")
    ACC0, ACC1, Y = 16, 32, 48
    HR, AP, XF, MF, WF, T2 = 64, 128, 160, 176, [208, 216, 224], 232
    PR, NPR = 128, 6
    A("v_lshrrev_b32 v58, 2, v1"); A("v_and_b32 v58, 3, v58")
    A("v_lshl_add_u32 v59, v4, 2, v58"); A("v_lshlrev_b32 v59, 7, v59")
    A("v_lshl_add_u32 v59, v7, 5, v59")
    A("v_and_b32 v61, 3, v1"); A("v_lshl_add_u32 v59, v61, 3, v59"); A(f"s_mul_i32 s44, s48, {KH}"); A("v_add_u32 v59, s44, v59")
    A("v_lshrrev_b32 v58, 1, v58"); A("v_xor_b32 v58, s48, v58")
    A("v_lshl_add_u32 v8, v58, 6, v59"); A("v_xor_b32 v9, 64, v8")
    for sl in (1, 2):
        A(f"v_add_u32 v{8+2*sl}, {sl*SLOT}, v8"); A(f"v_add_u32 v{9+2*sl}, {sl*SLOT}, v9")
    for st in range(NPR):
        for k, (v, o) in enumerate(((12, 0), (12, 1024), (13, 0), (13, 1024))):
            A(f"ds_read_b64_tr_b16 {vr(PR+8*st+2*k,2)}, v{v} offset:{st*2048+o}")
    A("v_lshlrev_b32 v60, 10, v4"); A("v_lshl_add_u32 v60, v7, 8, v60"); A("v_and_b32 v61, 15, v1"); A("v_lshl_add_u32 v60, v61, 4, v60")
    A("s_lshl_b32 s44, s46, 2"); A(f"s_add_u32 s44, s44, {SLOT + 22528}"); A("v_add_u32 v60, s44, v60")
    for n in range(8):
        A(f"v_permlane16_swap_b32 v{P+2*n}, v{P+2*n+1}"); A(f"v_permlane16_swap_b32 v{Q2+2*n}, v{Q2+2*n+1}")
    for n in range(8):
        t1 = 8*(n//2) + 2*(n % 2)
        A(f"v_sub_f32 v{P+2*n}, v{P+2*n}, v{Q2+2*n+1}"); A(f"v_add_f32 v{P+2*n+1}, v{P+2*n+1}, v{Q2+2*n}")
        A(f"v_cvt_pk_bf16_f32 v{Q2+2*n}, v{P+2*n}, v{P+2*n+1}")
        A(f"ds_write_b32 v60, v{Q2+2*n} offset:{(t1 % 16)*256 + (t1//16)*KH}")
    A("s_waitcnt lgkmcnt(0)"); A("s_barrier")
    stamp(cfg, A, 10)
    A("s_setprio 0")
    A("v_add_u32 v5, s53, v3"); A("v_sub_u32 v6, 512, v5"); A("v_and_b32 v6, 255, v6")
    A("s_sub_u32 s44, 32, s23"); A("s_and_b32 s44, s44, 31"); A(f"s_mov_b32 s47, {f32(-1/2048)}")
    A("s_cmp_lt_u32 s22, 4"); A("s_cselect_b32 s54, s23, s44"); A("s_cselect_b64 vcc, -1, 0"); A(f"s_cselect_b32 s47, {f32(1/2048)}, s47")
    A("v_cndmask_b32 v6, v6, v5, vcc"); A("v_lshlrev_b32 v6, 4, v6"); A("v_lshl_add_u32 v6, v4, 17, v6")
    A("v_cmp_eq_u32 vcc, 0, v5"); A(f"v_mov_b32 v61, {OOB}"); A("v_cndmask_b32 v6, v6, v61, vcc")
    A("s_lshl_b32 s54, s54, 12"); A(f"s_add_u32 s54, s54, {WS_AP}")
    A("s_mul_i32 s51, s52, 86"); A("s_mul_i32 s44, s48, 43"); A("s_add_u32 s51, s51, s44"); A("s_lshl_b32 s51, s51, 10")
    A("v_lshlrev_b32 v14, 4, v1"); A("v_mul_f32 v2, v2, v2")
    for r in range(32): A(f"v_mov_b32 v{ACC0+r}, 0")
    GPRE(A)
    A("s_waitcnt vmcnt(0)")
    A("s_mov_b64 exec, 1"); A(f"buffer_store_dword v{VO+4}, v{VO+3}, s[40:43], s60 offen"); A("s_mov_b64 exec, -1")
    stamp(cfg, A, 11)
    A("s_cmp_eq_u32 s46, 0"); A("s_cbranch_scc1 K_c0")
    lds_await(A, "K_s2", L_S2, 58, False)
    A("s_branch K_c1")
    A("K_c0:")
    A("v_lshlrev_b32 v60, 2, v1"); A(f"s_add_u32 s45, s60, {WS_FS - WS_FF}")
    def own_then_safe():
        A("v_and_b32 v61, 3, v1"); A("v_lshlrev_b32 v61, 2, v61"); A("s_lshl_b32 s44, s17, 4"); A("v_add_u32 v61, s44, v61")
        poll(A, "K_p2own", 61, None, "s60", 62)
        A("s_mov_b64 exec, 15"); A(f"buffer_store_dword v{VO+4}, v61, s[40:43], s45 offen sc1"); A("s_mov_b64 exec, -1")
    poll(A, "K_p2", 60, "s60", "s45", 62, on_timeout=own_then_safe)
    lds_signal(A, L_S2, 58)
    A("K_c1:")
    stamp(cfg, A, 12)
    if cfg.stamps: A("s_waitcnt lgkmcnt(0)")
    NST, AH = 43, cfg.ahead
    queue = []
    hfl = '' if cfg.hld in ('plain', 'off') else " " + cfg.hld
    def hload(st):
        queue.append(("h", st))
        I = [f"buffer_load_dwordx4 {vr(HR+4*(st % 16),4)}, v14, s[40:43], s51 offen offset:{1024*(st % 4)}{hfl}"]
        return I + (["s_add_u32 s51, s51, 4096"] if st % 4 == 3 else [])
    def waitfor(item):
        A(f"s_waitcnt vmcnt({len(queue) - 1 - queue.index(item)})")
    def waddr(st):
        if st < 13: return 12, st*2048
        if st < 26: return 8, (st-13)*2048
        if st < 37: return 10, (st-26)*2048
        return 12, (st-37)*2048
    def wreads(st):
        b = WF[st % 3]; v, o = waddr(st)
        return [f"ds_read_b64_tr_b16 {vr(b+4,2)}, v{v+1} offset:{o}", f"ds_read_b64_tr_b16 {vr(b+6,2)}, v{v+1} offset:{o+1024}",
                f"ds_read_b64_tr_b16 {vr(b,2)}, v{v} offset:{o}", f"ds_read_b64_tr_b16 {vr(b+2,2)}, v{v} offset:{o+1024}"]
    if cfg.hld == "off": A(f"s_mov_b32 s51, {OOB}")
    for st in range(AH): L += hload(st)
    ydone = False
    XU = [f"v_lshlrev_b32 v{XF+2*n}, 16, v{XP+n}" for n in range(8)] + [f"v_and_b32 v{XF+2*n+1}, 0xffff0000, v{XP+n}" for n in range(8)]
    YS = []; AQ = []; lq = []
    def lissue(st, part):
        if NPR <= st < NST:
            L.extend(wreads(st)[2*part:2*part+2]); lq.extend([(st, part, 0), (st, part, 1)])
    def waits(st, part, need_h):
        w = []
        if need_h: w.append(f"vmcnt({len(queue) - 1 - queue.index(('h', st))})")
        if st >= NPR: w.append(f"lgkmcnt({len(lq) - 1 - lq.index((st, part, 1))})")
        if w: A("s_waitcnt " + " ".join(w))
    waits(0, 0, True)
    for st in range(NST):
        nx = st + 2
        b = WF[st % 3] if st >= NPR else PR + 8*st
        h = HR + 4*(st % 16)
        if st == NPR + 1: G[0:0] = XU
        src = G if G else (YS if ydone and st > ystep else [])
        A(f"v_mfma_f32_32x32x16_bf16 {vr(ACC1,16)}, {vr(b+4,4)}, {vr(h,4)}, {vr(ACC1,16)}")
        if st == cfg.s3step:
            lds_await(A, "K_s3", L_S3, T2, True); AQ = list(range(8))
        if nx == 26: lds_await(A, "K_sw", L_SW, T2, True)
        if st == 30: A("s_barrier")
        lissue(nx, 0)
        if AQ:
            k = AQ.pop(0); A(f"buffer_load_dwordx4 {vr(AP+4*k,4)}, v6, s[40:43], s54 offen sc1"); A("s_add_u32 s54, s54, 0x40000"); queue.append(("a", k))
        else:
            for _ in range(2):
                if src: A(src.pop(0))
        waits(st, 1, False)
        A(f"v_mfma_f32_32x32x16_bf16 {vr(ACC0,16)}, {vr(b,4)}, {vr(h,4)}, {vr(ACC0,16)}")
        lissue(nx, 1)
        if st + AH < NST: L += hload(st + AH)
        elif AQ:
            k = AQ.pop(0); A(f"buffer_load_dwordx4 {vr(AP+4*k,4)}, v6, s[40:43], s54 offen sc1"); A("s_add_u32 s54, s54, 0x40000"); queue.append(("a", k))
        elif src: A(src.pop(0))
        if st + 1 < NST:
            waits(st + 1, 0, True)
            if not ydone and ("a", 7) in queue and queue.index(("a", 7)) < queue.index(("h", st + 1)):
                L += G; G.clear()
                for k in range(8): A(f"v_mfma_f32_32x32x16_bf16 {vr(Y,16)}, {vr(AP+4*k,4)}, {vr(MF+4*k,4)}, {vr(Y,16) if k else 0}")
                ydone = True; ystep = st + 1
                YS = [f"v_mul_f32 v{Y+r}, v{Y+r}, v2" for r in range(16)] + [f"v_mul_f32 v2, {f32(-1.4426950408889634)}, v2"]
    assert not AQ and not G and cfg.s3step < 30 and cfg.gpre >= 134
    if not ydone:
        waitfor(("a", 7))
        for k in range(8): A(f"v_mfma_f32_32x32x16_bf16 {vr(Y,16)}, {vr(AP+4*k,4)}, {vr(MF+4*k,4)}, {vr(Y,16) if k else 0}")
        YS = [f"v_mul_f32 v{Y+r}, v{Y+r}, v2" for r in range(16)] + [f"v_mul_f32 v2, {f32(-1.4426950408889634)}, v2"]
        late_ys = YS; YS = []
    else: late_ys = []
    L += YS
    stamp(cfg, A, 13)
    A("s_lshl_b32 s44, s46, 12"); A("s_xor_b32 s45, s44, 8192")
    A("v_add_u32 v12, s44, v14"); A("v_add_u32 v13, s45, v14")
    A("s_lshl_b32 s44, s46, 11"); A("s_add_u32 s44, s44, 16384"); A(f"v_add_u32 v8, s44, v{VO+2}"); A("v_add_u32 v15, s44, v14")
    for jj in range(1, 4): A(f"v_xor_b32 v{8+jj}, {16*jj}, v8")
    for q in range(4): A(f"ds_write_b128 v12, {vr(ACC1+4*q,4)} offset:{1024*q}")
    L += late_ys
    A("s_waitcnt lgkmcnt(0)"); A("s_barrier")
    for q in range(4): A(f"ds_read_b128 {vr(ACC1+4*q,4)}, v13 offset:{1024*q}")
    A("v_mov_b32 v3, v2"); A("v_mov_b32 v4, 1.0"); A("v_mov_b32 v5, 1.0")
    E = HR
    for q in range(4):
        R2 = range(4*q, 4*q+4, 2); R = range(4*q, 4*q+4)
        A(f"s_waitcnt lgkmcnt({3 if q == 0 else 3})" if q < 3 else "s_waitcnt lgkmcnt(3)")
        for r in R2: A(f"v_pk_add_f32 {vr(ACC0+r,2)}, {vr(ACC0+r,2)}, {vr(ACC1+r,2)}")
        for r in R2: A(f"v_pk_mul_f32 {vr(E+r,2)}, {vr(ACC0+r,2)}, v[2:3]")
        for r in R: A(f"v_exp_f32 v{E+r}, v{E+r}")
        for r in R2: A(f"v_pk_mul_f32 {vr(ACC0+r,2)}, {vr(ACC0+r,2)}, {vr(Y+r,2)}")
        for r in R2: A(f"v_pk_add_f32 {vr(E+r,2)}, {vr(E+r,2)}, v[4:5]")
        for r in R: A(f"v_rcp_f32 v{E+r}, v{E+r}")
        for r in R2: A(f"v_pk_fma_f32 {vr(ACC0+r,2)}, {vr(ACC0+r,2)}, {vr(E+r,2)}, {vr(XF+r,2)}")
        A(f"v_cvt_pk_bf16_f32 v{T2+2*q}, v{ACC0+4*q}, v{ACC0+4*q+1}"); A(f"v_cvt_pk_bf16_f32 v{T2+2*q+1}, v{ACC0+4*q+2}, v{ACC0+4*q+3}")
        A(f"ds_write_b64 v{8+q}, {vr(T2+2*q,2)}")
    A("s_waitcnt lgkmcnt(0)")
    A(f"ds_read_b128 {vr(E,4)}, v15"); A(f"ds_read_b128 {vr(E+4,4)}, v15 offset:1024")
    A("s_waitcnt lgkmcnt(1)"); A(f"buffer_store_dwordx4 {vr(E,4)}, v{VO}, s[32:35], 0 offen")
    A("s_waitcnt lgkmcnt(0)"); A(f"buffer_store_dwordx4 {vr(E+4,4)}, v{VO+1}, s[32:35], 0 offen")
    stamp(cfg, A, 14)
    if cfg.stamps: A("s_waitcnt vmcnt(0)")
    rstamp(cfg, A, 15); dump(cfg, A)
    return L

def build(cfg):
    ref = open(f"cdna_kernels/{NAME}.s.ref").read().split("\n")
    head = [l for l in ref if l.startswith(";   offset") or l.startswith("; Kernarg")]
    kn = NAME + "_kernel"
    body = ["K_start:"] + prologue(cfg) + loader(cfg) + ["K_compute:"] + compute(cfg) + ["K_end:", "s_endpgm", "K_stop:"]
    out = head + [f"; @launch grid=(256,1,1) block=(512,1,1) lds={LDS}", '.amdgcn_target "amdgcn-amd-amdhsa--gfx950"', ".text",
                  f".globl {kn}", ".p2align 8", f".type {kn},@function", f"{kn}:"] + pad(body)
    out += ['.section .rodata,"a"', ".p2align 6", f""".amdhsa_kernel {kn}
  .amdhsa_next_free_vgpr 256
  .amdhsa_next_free_sgpr 102
  .amdhsa_accum_offset 256
  .amdhsa_group_segment_fixed_size 0
  .amdhsa_kernarg_size 96
  .amdhsa_user_sgpr_count 2
  .amdhsa_user_sgpr_kernarg_segment_ptr 1
  .amdhsa_system_sgpr_workgroup_id_x 1
.end_amdhsa_kernel"""]
    return "\n".join(out) + "\n"

if __name__ == "__main__":
    cfg = Cfg()
    for a in sys.argv[2:]:
        k, v = a.split("="); setattr(cfg, k, (v == "1") if isinstance(getattr(cfg, k), bool) else type(getattr(cfg, k))(v))
    open(sys.argv[1], "w").write(build(cfg))
```
